```python
import torch

def _softmax(x, axis=-1):
    return torch.softmax(x, dim=axis)
def _gelu(x):
    return torch.nn.functional.gelu(x, approximate="tanh")
def _silu(x):
    return torch.nn.functional.silu(x)
def _sigmoid(x):
    return torch.sigmoid(x)
def _layernorm(x, axis=-1, eps=1e-5):
    m = x.mean(dim=axis, keepdim=True)
    v = x.var(dim=axis, keepdim=True, unbiased=False)
    return (x - m) / torch.sqrt(v + eps)
def _scatter_add(tgt, idx, src, axis=0):
    return tgt.clone().index_add_(axis, idx, src)
def _segment_sum(src, seg, n):
    out = torch.zeros((n,) + src.shape[1:], dtype=src.dtype)
    return out.index_add_(0, seg, src)
def _pad(x, pw):
    flat = tuple(v for pair in reversed(pw) for v in pair)
    return torch.nn.functional.pad(x, flat)

kernel_name = 'sequential_preLN__sliding_block_cached__glu_gated_swiglu__decode'

def setup_inputs():

    _w = (lambda a: (lambda t: t.to(torch.bfloat16) if t.is_floating_point() else t)(torch.as_tensor(a)))
    def _A_setup():
        B, Sq, D = 1, 1, 512
        Hq, Hkv, Sk, Dh = 32, 8, 65536, 128
        assert Hq % Hkv == 0, (Hq, Hkv)
        return {
            "x": _w((lambda *s: torch.randn(*s, dtype=torch.bfloat16) * 0.05)(B, Sq, D)),
            "k_cache": _w((lambda *s: torch.randn(*s, dtype=torch.bfloat16) * 1.6)(B, Hkv, Sk, Dh)),
            "v_cache": _w((lambda *s: torch.randn(*s, dtype=torch.bfloat16) * 0.8)(B, Hkv, Sk, Dh)),
            "wq": _w((lambda *s: torch.randn(*s, dtype=torch.bfloat16) * 1.6)(D, Hq * Dh) * (D ** -0.5)),
            "wo": _w((lambda *s: torch.randn(*s, dtype=torch.bfloat16) * 0.8)(Hq * Dh, D) * ((Hq * Dh) ** -0.5)),
        }
    _A_in = _A_setup()

    def _B_setup():
        B, S, D, F = 1, 1, 512, 1792
        return {
            "x": _w((lambda *s: torch.randn(*s, dtype=torch.bfloat16) * 0.05)(B, S, D)),
            "w1": _w((lambda *s: torch.randn(*s, dtype=torch.bfloat16) * 0.4)(D, F) * (2.0 / D) ** 0.5),
            "w3": _w((lambda *s: torch.randn(*s, dtype=torch.bfloat16) * 0.4)(D, F) * (2.0 / D) ** 0.5),
            "w2": _w((lambda *s: torch.randn(*s, dtype=torch.bfloat16) * 0.4)(F, D) * (2.0 / F) ** 0.5),
        }
    _B_in = _B_setup()

    return {
        "A_x": _A_in["x"],
        "A_k_cache": _A_in["k_cache"],
        "A_v_cache": _A_in["v_cache"],
        "A_wq": _A_in["wq"],
        "A_wo": _A_in["wo"],
        "B_x": _B_in["x"],
        "B_w1": _B_in["w1"],
        "B_w3": _B_in["w3"],
        "B_w2": _B_in["w2"],
    }

def reference(A_x, A_k_cache, A_v_cache, A_wq, A_wo, B_x, B_w1, B_w3, B_w2):
    def _A_ref(x, k_cache, v_cache, wq, wo):
        B, Sq, D = x.shape
        Hq, Dh = 32, 128
        Hkv, Sk = k_cache.shape[1], k_cache.shape[2]
        W = min(4096, max(256, Sk // 4))
        rep = Hq // Hkv
        q = (lambda x, *d: x.permute(*d))((x @ wq).reshape(B, Sq, Hq, Dh), 0, 2, 1, 3)
        k = (lambda x, n, axis: torch.repeat_interleave(x, n, dim=axis))(k_cache[:, :, Sk - W:, :], rep, axis=1)
        v = (lambda x, n, axis: torch.repeat_interleave(x, n, dim=axis))(v_cache[:, :, Sk - W:, :], rep, axis=1)
        scores = torch.einsum("bhqd,bhkd->bhqk", q, k) * (Dh ** -0.5)
        p = _softmax(scores, axis=-1)
        o = torch.einsum("bhqk,bhkd->bhqd", p, v)
        return (lambda x, *d: x.permute(*d))(o, 0, 2, 1, 3).reshape(B, Sq, Hq * Dh) @ wo

    def _B_ref(x, w1, w3, w2):
        gate = torch.einsum("bsd,df->bsf", x, w1)
        up = torch.einsum("bsd,df->bsf", x, w3)
        h = _silu(gate) * up
        out = torch.einsum("bsf,fd->bsd", h, w2)
        return out

    x = A_x
    h = x + _A_ref(_layernorm(x, axis=-1), A_k_cache, A_v_cache, A_wq, A_wo)
    h2 = h + _B_ref(_layernorm(h, axis=-1), B_w1, B_w3, B_w2)
    return h2
```

```python
KNAME = "sequential_preLN__sliding_block_cached__glu_gated_swiglu__decode_kernel"

HEADER = """; Kernarg layout for this problem (96 bytes, ptrs only, base s[0:1]):
"""

class Asm:
    def __init__(self):
        self.lines = []
    def __call__(self, s):
        for l in s.strip("\n").split("\n"):
            self.lines.append("    " + l.strip() if not l.strip().endswith(":") else l.strip())
    def label(self, name):
        self.lines.append(name + ":")
    def text(self):
        return "\n".join(self.lines) + "\n"

def wrap_single(body, grid, block, lds, nvgpr, nsgpr=102, accum=None, name=KNAME):
    if accum is None:
        accum = (nvgpr + 3) // 4 * 4
    s = HEADER
    s += f"; @launch grid=({grid},1,1) block=({block},1,1) lds={lds}\n"
    s += f""".amdgcn_target "amdgcn-amd-amdhsa--gfx950"
.text
.globl {name}
.p2align 8
.type {name},@function
{name}:
"""
    s += body
    s += f""".section .rodata,"a"
.p2align 6
.amdhsa_kernel {name}
  .amdhsa_next_free_vgpr {nvgpr}
  .amdhsa_next_free_sgpr {nsgpr}
  .amdhsa_accum_offset {accum}
  .amdhsa_group_segment_fixed_size 0
  .amdhsa_kernarg_size 96
  .amdhsa_user_sgpr_count 2
  .amdhsa_user_sgpr_kernarg_segment_ptr 1
  .amdhsa_system_sgpr_workgroup_id_x 1
.end_amdhsa_kernel
"""
    return s
```

```python
import sys
from asmlib import *

E_OFF  = 0x0
QP_OFF = 0x1000
QX_OFF = 0x11000
ML_OFF = 0x12000
AP_OFF = 0x20000
WP_OFF = 0xA0000
FP_OFF = 0xB0000
ST_OFF = 0xF0000
OP_OFF = 0x100000
TS_OFF = 0x200000

LDS_RED  = 0
LDS_Q    = 20480
LDS_MX   = 21504
LDS_L    = 22016
LDS_STAT = 22528
LDS_RED2 = 24576
LDS_SIZE = 36864

TAGC = 0x9E3779B9
SCALE = 0.08838834764831845
import struct
def f2u(x): return struct.unpack("<I", struct.pack("<f", x))[0]

class G(Asm):
    def __init__(self, stamps=False):
        super().__init__()
        self.vm = []
        self.stamps = stamps
        self.nst = 0
        self.uid = 0
    def vmem(self, name, ins):
        self(ins); self.vm.append(name)
    def wait_vm(self, name):
        idx = max(i for i, n in enumerate(self.vm) if n == name)
        n_after = len(self.vm) - 1 - idx
        self(f"s_waitcnt vmcnt({n_after})")
        self.vm = self.vm[idx+1:]
    def wait_all(self):
        self("s_waitcnt vmcnt(0)"); self.vm = []
    def stamp(self):
        if self.stamps:
            k = self.nst; self.nst += 1
            assert k < 32
            self(f"s_memrealtime s[98:99]\ns_waitcnt lgkmcnt(0)\nv_writelane_b32 v127, s98, {k}")
    def lab(self, base):
        self.uid += 1
        return f"L_{base}_{self.uid}"

DPP = "row_mask:0xf bank_mask:0xf"
X1 = f"quad_perm:[1,0,3,2] {DPP}"
X2 = f"quad_perm:[2,3,0,1] {DPP}"
HM = f"row_half_mirror {DPP}"
RM = f"row_mirror {DPP}"

def dpp_reduce(a, op, regs, steps):
    for st in steps:
        a("s_nop 1") if len(regs) < 3 else None
        for r in regs:
            a(f"{op}_dpp {r}, {r}, {r} {st}")

def swap_reduce(a, op, r, t, which):
    a(f"v_mov_b32 {t}, {r}")
    a("s_nop 1")
    a(f"v_permlane{which}_swap_b32 {r}, {t}")
    a("s_nop 1")
    a(f"{op} {r}, {r}, {t}")

def bf16r(a, dst, src):
    a(f"v_cvt_pk_bf16_f32 {dst}, {src}, {src}")
    a(f"v_and_b32 {dst}, 0xffff0000, {dst}")

def gen(stamps=False):
    a = G(stamps)
    TID="v0"; L="v1"; L7="v2"; L3="v3"; KG="v4"; N="v5"
    M=["v6","v7","v8","v9"]
    VT1="v10"
    VT2="v11"
    VT2K="v12"
    VT1L="v13"
    XR="v14"
    H0="v15"; H1="v16"
    A_RW="v17"
    A_RR="v18"
    T=[f"v{i}" for i in range(20, 36)]
    WQ=36
    KR=44
    VR=60
    WO=76
    W13=84
    W2=92
    QF=96
    ACC=112
    BF=120
    BFa = 120; BFb = 128 if stamps else 124
    NV = 136 if stamps else 128
    def vr(b, n=4): return f"v[{b}:{b+n-1}]"

    a(f"""
    s_cmp_ge_u32 s2, 256
    s_cbranch_scc1 L_end
    s_load_dwordx16 s[4:19], s[0:1], 0
    s_load_dwordx8 s[20:27], s[0:1], 64
    s_and_b32 s28, s2, 7                     ; g
    s_lshr_b32 s29, s2, 3                    ; j
    v_and_b32 {L}, 63, {TID}
    v_lshrrev_b32 {T[0]}, 6, {TID}
    v_and_b32 {L7}, 7, {L}
    v_readfirstlane_b32 s30, {T[0]}          ; w
    v_lshrrev_b32 {L3}, 3, {L}
    v_lshrrev_b32 {KG}, 4, {L}
    v_and_b32 {N}, 15, {L}
    s_mov_b32 s65, 0xff
    s_mov_b32 s66, 0xffffff00
    s_mov_b32 s97, 0x400000
    """)
    if stamps:
        a("v_mov_b32 v127, 0")
    a.stamp()
    a(f"""
    v_and_b32 {T[0]}, 1, {L}
    v_cmp_eq_u32 vcc, 1, {T[0]}
    v_mov_b32 {T[1]}, 0xffff
    v_mov_b32 {T[2]}, 0xffff0000
    v_cndmask_b32 {T[1]}, {T[1]}, {T[2]}, vcc
    v_bfe_u32 {T[0]}, {L}, 1, 2                 ; jsel
    """)
    for j in range(4):
        a(f"v_cmp_eq_u32 vcc, {j}, {T[0]}")
        a("s_nop 1")
        a(f"v_cndmask_b32 {M[j]}, 0, {T[1]}, vcc")
    a(f"""
    s_lshl_b32 s31, s30, 4                   ; 16w
    v_lshlrev_b32 {T[0]}, 1, {L3}
    v_add_u32 {T[0]}, s31, {T[0]}
    v_lshlrev_b32 {T[1]}, 13, {T[0]}
    v_lshl_add_u32 {T[1]}, {L7}, 4, {T[1]}
    v_lshlrev_b32 {T[2]}, 1, {T[0]}
    v_lshlrev_b32 {T[3]}, 4, {L}             ; T3 = x4 offset
    v_lshl_add_u32 {T[4]}, {KG}, 1, 0
    s_lshl_b32 s31, s30, 3                   ; 8w
    v_add_u32 {T[4]}, s31, {T[4]}            ; 8w+2kg
    v_lshlrev_b32 {T[5]}, 1, {T[4]}
    s_lshl_b32 s31, s30, 12
    v_lshlrev_b32 {T[6]}, 8, {N}
    v_lshl_add_u32 {T[6]}, {KG}, 4, {T[6]}
    v_add_u32 {T[6]}, s31, {T[6]}            ; T6 = K voffset
    v_lshlrev_b32 {T[7]}, 10, {KG}
    v_lshl_add_u32 {T[7]}, {N}, 4, {T[7]}
    v_add_u32 v19, s31, {T[7]}
    v_mov_b32 {T[8]}, 0
    s_lshr_b32 s68, s29, 3
    s_and_b32 s69, s29, 7                    ; cb = j&7
    s_lshl_b32 s70, s68, 20
    s_lshl_b32 s31, s28, 10
    s_add_u32 s70, s70, s31
    s_lshl_b32 s31, s69, 7
    s_add_u32 s70, s70, s31
    s_add_u32 s71, s70, 8192
    s_lshl_b32 s72, s28, 24
    s_lshl_b32 s31, s29, 15
    s_add_u32 s72, s72, s31
    s_add_u32 s72, s72, {61440*256}          ; s72 = K/V soffset
    s_lshl_b32 s73, s68, 8
    s_lshl_b32 s74, s69, 7
    s_waitcnt lgkmcnt(0)
    """)
    def srd(base, lo, size):
        a(f"s_mov_b32 s{base}, s{lo}\ns_mov_b32 s{base+1}, s{lo+1}\ns_mov_b32 s{base+2}, {size}\ns_mov_b32 s{base+3}, 0x20000")
    srd(60, 26, 0x20000000)
    srd(48, 4, 1024)
    srd(40, 10, 0x400000)
    srd(32, 6, 0x8000000)
    XV = 20+9
    a.vmem("E",  f"buffer_load_dword {T[9]}, {T[8]}, s[60:63], 0 offen sc1")
    a.vmem("X4", f"buffer_load_dwordx4 v[32:35], {T[3]}, s[48:51], 0 offen")
    a.vmem("XQ", f"buffer_load_dword {T[10]}, {T[2]}, s[48:51], s73 offen")
    a.vmem("XR", f"buffer_load_dword {XR}, {T[5]}, s[48:51], s74 offen")
    a.vmem("WQ0", f"buffer_load_dwordx4 {vr(WQ)}, {T[1]}, s[40:43], s70 offen nt")
    a.vmem("WQ1", f"buffer_load_dwordx4 {vr(WQ+4)}, {T[1]}, s[40:43], s71 offen nt")
    a.vmem("K0", f"buffer_load_dwordx4 {vr(KR)}, {T[6]}, s[32:35], s72 offen nt")
    a.vmem("K1", f"buffer_load_dwordx4 {vr(KR+4)}, {T[6]}, s[32:35], s72 offen offset:64 nt")
    srd(36, 8, 0x8000000)
    srd(44, 12, 0x400000)
    srd(52, 22, 1024)
    srd(56, 20, 1792*512*2)
    a(f"""
    s_mul_i32 s31, s30, 528
    v_lshlrev_b32 {A_RW}, 7, {KG}
    v_lshl_add_u32 {A_RW}, {L7}, 4, {A_RW}
    v_add_u32 {A_RW}, s31, {A_RW}
    s_lshr_b32 s31, s30, 2
    s_lshl_b32 s31, s31, 5
    s_and_b32 s75, s30, 3
    s_add_u32 s31, s31, s75
    s_lshl_b32 s31, s31, 2                   ; (32*(w>>2) + (w&3))*4
    s_movk_i32 s75, 528
    v_mul_lo_u32 {A_RR}, {L7}, s75
    v_lshl_add_u32 {A_RR}, {L3}, 4, {A_RR}
    v_add_u32 {A_RR}, s31, {A_RR}
    s_getreg_b32 s76, hwreg(HW_REG_XCC_ID)
    s_and_b32 s76, s76, 15
    """)
    a.wait_vm("XR")
    a.stamp()
    a(f"""
    v_readfirstlane_b32 s64, {T[9]}
    s_add_u32 s64, s64, {TAGC}
    v_and_b32 {T[0]}, 3, {L3}
    v_lshlrev_b32 {T[0]}, 3, {T[0]}
    v_lshrrev_b32 {VT1}, {T[0]}, s64
    v_and_b32 {T[0]}, 1, {L3}
    v_lshlrev_b32 {T[0]}, 4, {T[0]}
    v_lshrrev_b32 {VT2}, {T[0]}, s64
    v_and_b32 {T[0]}, 1, {KG}
    v_lshlrev_b32 {T[0]}, 4, {T[0]}
    v_lshrrev_b32 {VT2K}, {T[0]}, s64
    v_and_b32 {T[0]}, 3, {L}
    v_lshlrev_b32 {T[0]}, 3, {T[0]}
    v_lshrrev_b32 {VT1L}, {T[0]}, s64
    """)
    U = [f"v{QF+i}" for i in range(8)]
    for i in range(4):
        a(f"v_lshlrev_b32 {U[2*i]}, 16, v{32+i}")
        a(f"v_and_b32 {U[2*i+1]}, 0xffff0000, v{32+i}")
    a(f"""
    v_add_f32 {T[0]}, {U[0]}, {U[1]}
    v_add_f32 {T[1]}, {U[2]}, {U[3]}
    v_add_f32 {T[2]}, {U[4]}, {U[5]}
    v_add_f32 {T[3]}, {U[6]}, {U[7]}
    v_add_f32 {T[0]}, {T[0]}, {T[1]}
    v_add_f32 {T[2]}, {T[2]}, {T[3]}
    v_add_f32 {T[0]}, {T[0]}, {T[2]}
    """)
    def wave_sum(r, t):
        dpp_reduce(a, "v_add_f32", [r], [X1, X2, HM, RM])
        swap_reduce(a, "v_add_f32", r, t, 16)
        swap_reduce(a, "v_add_f32", r, t, 32)
    wave_sum(T[0], T[1])
    a(f"v_mul_f32 {T[0]}, {hex(f2u(1.0/512))}, {T[0]}      ; mean")
    for i in range(8):
        a(f"v_sub_f32 {U[i]}, {U[i]}, {T[0]}")
    a(f"v_mul_f32 {T[1]}, {U[0]}, {U[0]}")
    for i in range(1, 8):
        a(f"v_fmac_f32 {T[1]}, {U[i]}, {U[i]}")
    wave_sum(T[1], T[2])
    a(f"v_mul_f32 {T[1]}, {hex(f2u(1.0/512))}, {T[1]}      ; var")
    def ln_finish(mean, var):
        bf16r(a, mean, mean)
        bf16r(a, var, var)
        a(f"v_add_f32 {var}, {hex(f2u(1e-5))}, {var}")
        bf16r(a, var, var)
        a(f"v_sqrt_f32 {var}, {var}")
        a("s_nop 0")
        bf16r(a, var, var)
        a(f"v_rcp_f32 {var}, {var}")
        a("s_nop 0")
    ln_finish(T[0], T[1])
    a(f"""
    v_lshlrev_b32 {T[2]}, 16, {T[10]}
    v_and_b32 {T[3]}, 0xffff0000, {T[10]}
    v_sub_f32 {T[2]}, {T[2]}, {T[0]}
    v_sub_f32 {T[3]}, {T[3]}, {T[0]}
    """)
    bf16r(a, T[2], T[2]); bf16r(a, T[3], T[3])
    a(f"""
    v_mul_f32 {T[2]}, {T[2]}, {T[1]}
    v_mul_f32 {T[3]}, {T[3]}, {T[1]}
    v_cvt_pk_bf16_f32 {T[2]}, {T[2]}, {T[2]}
    v_cvt_pk_bf16_f32 {T[3]}, {T[3]}, {T[3]}
    """)
    def bfrag(base, dup):
        for j in range(4):
            a(f"v_and_b32 v{base+j}, {dup}, {M[j]}")
    bfrag(BFa, T[2]); bfrag(BFb, T[3])
    a.wait_vm("WQ1")
    a.stamp()
    a.vmem("K2", f"buffer_load_dwordx4 {vr(KR+8)}, {T[6]}, s[32:35], s72 offen offset:128 nt")
    a.vmem("K3", f"buffer_load_dwordx4 {vr(KR+12)}, {T[6]}, s[32:35], s72 offen offset:192 nt")
    a(f"v_mfma_f32_16x16x32_bf16 {vr(ACC)}, {vr(WQ)}, {vr(BFa)}, 0")
    a(f"v_mfma_f32_16x16x32_bf16 {vr(ACC)}, {vr(WQ+4)}, {vr(BFb)}, {vr(ACC)}")

    def diag_reduce(ldsbase, out):
        a("s_nop 7")
        a("s_mov_b32 exec_lo, 0x00ff00ff\ns_mov_b32 exec_hi, 0xff00ff00")
        a(f"ds_write_b128 {A_RW}, {vr(ACC)} offset:{ldsbase}")
        a("s_mov_b64 exec, -1")
        a("s_waitcnt lgkmcnt(0)\ns_barrier")
        a(f"ds_read_b32 {T[14]}, {A_RR} offset:{ldsbase}")
        a(f"ds_read_b32 {T[15]}, {A_RR} offset:{ldsbase+256}")
        a("s_waitcnt lgkmcnt(0)")
        a(f"v_add_f32 {out}, {T[14]}, {T[15]}")
        dpp_reduce(a, "v_add_f32", [out], [X1, X2, HM])
    diag_reduce(LDS_RED, T[0])
    a(f"""
    v_bfi_b32 {T[0]}, s65, {VT1}, {T[0]}
    s_lshl_b32 s77, s28, 13
    s_lshl_b32 s31, s68, 11
    s_add_u32 s77, s77, s31
    s_lshl_b32 s31, s69, 8
    s_add_u32 s77, s77, s31
    s_lshl_b32 s31, s30, 5
    s_add_u32 s77, s77, s31
    s_add_u32 s77, s77, {QP_OFF}
    v_lshlrev_b32 {T[13]}, 2, {L3}
    s_mov_b32 exec_lo, 0x01010101
    s_mov_b32 exec_hi, 0x01010101
    """)
    a.vmem("STQ", f"buffer_store_dword {T[0]}, {T[13]}, s[60:63], s77 offen sc1")
    a("s_mov_b64 exec, -1")
    lq = a.lab("noqx")
    a(f"""
    s_cmp_lg_u32 s30, 0
    s_cbranch_scc1 {lq}
    v_mov_b32 {T[0]}, s76
    v_mov_b32 {T[1]}, s64
    s_lshl_b32 s31, s28, 8
    s_lshl_b32 s77, s29, 3
    s_add_u32 s77, s77, s31
    s_add_u32 s77, s77, {QX_OFF}
    s_mov_b64 exec, 1
    buffer_store_dwordx2 v[20:21], {T[8]}, s[60:63], s77 offen sc1
    s_mov_b64 exec, -1
    {lq}:
    """)
    a.stamp()
    a.wait_vm("K1")
    a.vmem("V0", f"buffer_load_dwordx4 {vr(VR)}, v19, s[36:39], s72 offen nt")
    a.vmem("V1", f"buffer_load_dwordx4 {vr(VR+4)}, v19, s[36:39], s72 offen offset:256 nt")
    a(f"""
    v_lshlrev_b32 {T[4]}, 2, {TID}            ; col t*4
    s_lshl_b32 s77, s28, 13
    s_add_u32 s77, s77, {QP_OFF}              ; QP[g]
    s_add_u32 s78, s77, 4096
    v_and_b32 {T[5]}, 31, {L}
    v_lshlrev_b32 {T[5]}, 3, {T[5]}
    s_lshl_b32 s79, s28, 8
    s_add_u32 s79, s79, {QX_OFF}
    """)
    a.wait_vm("K3")
    a.stamp()
    def qpoll(main):
        ins = [
          f"buffer_load_dword {T[0]}, {T[4]}, s[60:63], s77 offen sc1",
          f"buffer_load_dword {T[1]}, {T[4]}, s[60:63], s77 offen offset:2048 sc1",
          f"buffer_load_dword {T[2]}, {T[4]}, s[60:63], s78 offen sc1",
          f"buffer_load_dword {T[3]}, {T[4]}, s[60:63], s78 offen offset:2048 sc1",
          f"buffer_load_dwordx2 v[26:27], {T[5]}, s[60:63], s79 offen sc1",
        ]
        for i, s in enumerate(ins):
            if main: a.vmem(f"QP{i}", s)
            else: a(s)
    qpoll(True)
    a.vmem("V2", f"buffer_load_dwordx4 {vr(VR+8)}, v19, s[36:39], s72 offen offset:512 nt")
    a.vmem("V3", f"buffer_load_dwordx4 {vr(VR+12)}, v19, s[36:39], s72 offen offset:768 nt")
    a(f"""
    s_lshl_b32 s31, s30, 14
    v_lshlrev_b32 {T[12]}, 11, {L3}
    v_lshl_add_u32 {T[12]}, {L7}, 4, {T[12]}
    v_add_u32 {T[12]}, s31, {T[12]}
    s_lshl_b32 s80, s28, 19
    s_lshl_b32 s31, s68, 17
    s_add_u32 s80, s80, s31
    s_lshl_b32 s31, s69, 7
    s_add_u32 s80, s80, s31
    """)
    a.wait_vm("QP4")
    lchk = a.lab("qchk"); lok = a.lab("qok")
    a(f"{lchk}:")
    for i in range(4):
        a(f"v_cmpx_eq_u32_sdwa vcc, {T[i]}, {VT1L} src0_sel:BYTE_0 src1_sel:BYTE_0")
    a(f"""
    v_cmpx_eq_u32 vcc, s64, v27
    s_cmp_eq_u64 exec, -1
    s_mov_b64 exec, -1
    s_cbranch_scc1 {lok}
    s_sub_u32 s97, s97, 1
    s_cbranch_scc1 L_end
    s_sleep 1
    """)
    qpoll(False)
    a(f"s_waitcnt vmcnt(0)\ns_branch {lchk}\n{lok}:")
    a.stamp()
    a.vmem("WO0", f"buffer_load_dwordx4 {vr(WO)}, {T[12]}, s[44:47], s80 offen nt")
    a.vmem("WO1", f"buffer_load_dwordx4 {vr(WO+4)}, {T[12]}, s[44:47], s80 offen offset:1024 nt")
    a(f"""
    v_cmp_ne_u32 vcc, s76, v26
    s_cmp_eq_u64 vcc, 0
    s_cselect_b32 s67, 1, 0
    v_and_b32 {T[0]}, s66, {T[0]}
    v_and_b32 {T[1]}, s66, {T[1]}
    v_and_b32 {T[2]}, s66, {T[2]}
    v_and_b32 {T[3]}, s66, {T[3]}
    v_add_f32 {T[0]}, {T[0]}, {T[1]}
    v_add_f32 {T[2]}, {T[2]}, {T[3]}
    v_add_f32 {T[0]}, {T[0]}, {T[2]}
    v_cvt_pk_bf16_f32 {T[0]}, {T[0]}, {T[0]}
    v_lshlrev_b32 {T[1]}, 1, {TID}
    ds_write_b16 {T[1]}, {T[0]} offset:{LDS_Q}
    v_lshrrev_b32 {T[2]}, 3, {N}
    v_bfe_u32 {T[3]}, {N}, 2, 1
    v_lshl_add_u32 {T[2]}, {T[3]}, 1, {T[2]}
    v_lshlrev_b32 {T[2]}, 8, {T[2]}
    v_lshl_add_u32 {T[2]}, {KG}, 4, {T[2]}
    s_waitcnt lgkmcnt(0)
    s_barrier
    """)
    for s in range(4):
        a(f"ds_read_b128 {vr(QF+4*s)}, {T[2]} offset:{LDS_Q+64*s}")
    for s in range(4):
        a(f"s_waitcnt lgkmcnt({3-s})")
        a(f"v_mfma_f32_16x16x32_bf16 {vr(ACC)}, {vr(KR+4*s)}, {vr(QF+4*s)}, {'0' if s==0 else vr(ACC)}")
    a("s_nop 7")
    S = [T[0], T[1], T[2], T[3]]
    a(f"""
    s_mov_b32 s31, {hex(f2u(SCALE))}
    v_cvt_pk_bf16_f32 {T[4]}, v{ACC}, v{ACC+1}
    v_cvt_pk_bf16_f32 {T[5]}, v{ACC+2}, v{ACC+3}
    v_lshlrev_b32 {S[0]}, 16, {T[4]}
    v_and_b32 {S[1]}, 0xffff0000, {T[4]}
    v_lshlrev_b32 {S[2]}, 16, {T[5]}
    v_and_b32 {S[3]}, 0xffff0000, {T[5]}
    v_mul_f32 {S[0]}, s31, {S[0]}
    v_mul_f32 {S[1]}, s31, {S[1]}
    v_mul_f32 {S[2]}, s31, {S[2]}
    v_mul_f32 {S[3]}, s31, {S[3]}
    v_cvt_pk_bf16_f32 {T[4]}, {S[0]}, {S[1]}
    v_cvt_pk_bf16_f32 {T[5]}, {S[2]}, {S[3]}
    v_lshlrev_b32 {S[0]}, 16, {T[4]}
    v_and_b32 {S[1]}, 0xffff0000, {T[4]}
    v_lshlrev_b32 {S[2]}, 16, {T[5]}
    v_and_b32 {S[3]}, 0xffff0000, {T[5]}
    v_max3_f32 {T[4]}, {S[0]}, {S[1]}, {S[2]}
    v_max_f32 {T[4]}, {T[4]}, {S[3]}
    """)
    swap_reduce(a, "v_max_f32", T[4], T[5], 16)
    swap_reduce(a, "v_max_f32", T[4], T[5], 32)
    a(f"""
    s_lshl_b32 s31, s30, 6
    v_lshlrev_b32 {T[6]}, 2, {N}              ; n*4
    v_add_u32 {T[7]}, s31, {T[6]}             ; w*64 + n*4
    ds_write_b32 {T[7]}, {T[4]} offset:{LDS_MX}
    s_waitcnt lgkmcnt(0)
    s_barrier
    """)
    for w2 in range(4):
        a(f"ds_read2_b32 v[{QF+2*w2}:{QF+2*w2+1}], {T[6]} offset0:{(LDS_MX//4 + 32*w2) % 256 if False else 0} offset1:16") if False else None
    a(f"v_add_u32 {T[8]}, {LDS_MX}, {T[6]}")
    for w2 in range(4):
        a(f"ds_read2_b32 v[{QF+2*w2}:{QF+2*w2+1}], {T[8]} offset0:{32*w2} offset1:{32*w2+16}")
    a(f"""
    s_waitcnt lgkmcnt(0)
    v_max3_f32 {T[4]}, v{QF}, v{QF+1}, v{QF+2}
    v_max3_f32 {T[5]}, v{QF+3}, v{QF+4}, v{QF+5}
    v_max3_f32 {T[4]}, {T[4]}, v{QF+6}, v{QF+7}
    v_max_f32 {T[4]}, {T[4]}, {T[5]}
    s_mov_b32 s31, {hex(f2u(1.4426950408889634))}
    v_sub_f32 {S[0]}, {S[0]}, {T[4]}
    v_sub_f32 {S[1]}, {S[1]}, {T[4]}
    v_sub_f32 {S[2]}, {S[2]}, {T[4]}
    v_sub_f32 {S[3]}, {S[3]}, {T[4]}
    v_mul_f32 {S[0]}, s31, {S[0]}
    v_mul_f32 {S[1]}, s31, {S[1]}
    v_mul_f32 {S[2]}, s31, {S[2]}
    v_mul_f32 {S[3]}, s31, {S[3]}
    v_exp_f32 {S[0]}, {S[0]}
    v_exp_f32 {S[1]}, {S[1]}
    v_exp_f32 {S[2]}, {S[2]}
    v_exp_f32 {S[3]}, {S[3]}
    s_nop 0
    v_add_f32 {T[5]}, {S[0]}, {S[1]}
    v_add_f32 {T[9]}, {S[2]}, {S[3]}
    v_add_f32 {T[5]}, {T[5]}, {T[9]}
    v_cvt_pk_bf16_f32 {S[0]}, {S[0]}, {S[0]}
    v_cvt_pk_bf16_f32 {S[1]}, {S[1]}, {S[1]}
    v_cvt_pk_bf16_f32 {S[2]}, {S[2]}, {S[2]}
    v_cvt_pk_bf16_f32 {S[3]}, {S[3]}, {S[3]}
    """)
    swap_reduce(a, "v_add_f32", T[5], T[9], 16)
    swap_reduce(a, "v_add_f32", T[5], T[9], 32)
    a(f"ds_write_b32 {T[7]}, {T[5]} offset:{LDS_L}")
    SHR = f"row_shr:4 {DPP} bound_ctrl:0"; SHL = f"row_shl:4 {DPP} bound_ctrl:0"
    def pv(r, fa, fb, first):
        p = S[r]
        a(f"v_and_b32 v{fa}, {p}, {M[0]}")
        a(f"v_and_b32 v{fa+1}, {p}, {M[1]}")
        a(f"v_and_b32_dpp v{fa+2}, {p}, {M[2]} {SHR}")
        a(f"v_and_b32_dpp v{fa+3}, {p}, {M[3]} {SHR}")
        a(f"v_and_b32_dpp v{fb}, {p}, {M[0]} {SHL}")
        a(f"v_and_b32_dpp v{fb+1}, {p}, {M[1]} {SHL}")
        a(f"v_and_b32 v{fb+2}, {p}, {M[2]}")
        a(f"v_and_b32 v{fb+3}, {p}, {M[3]}")
    def pvm(r, fa, fb, first):
        a(f"v_mfma_f32_16x16x32_bf16 {vr(ACC)}, {vr(VR+4*r)}, {vr(fa)}, {'0' if first else vr(ACC)}")
        a(f"v_mfma_f32_16x16x32_bf16 {vr(ACC+4)}, {vr(VR+4*r)}, {vr(fb)}, {'0' if first else vr(ACC+4)}")
    pv(0, BFa, BFb, True)
    pv(1, WQ, WQ+4, False)
    pv(2, QF, QF+4, False)
    pv(3, QF+8, QF+12, False)
    a("s_nop 1")
    pvm(0, BFa, BFb, True)
    pvm(1, WQ, WQ+4, False)
    a("s_waitcnt lgkmcnt(0)\ns_barrier")
    lml = a.lab("noml")
    a(f"""
    s_cmp_lg_u32 s30, 0
    s_cbranch_scc1 {lml}
    v_add_u32 {T[8]}, {LDS_L}, {T[6]}
    ds_read2_b32 v[{KR}:{KR+1}], {T[8]} offset0:0 offset1:16
    ds_read2_b32 v[{KR+2}:{KR+3}], {T[8]} offset0:32 offset1:48
    ds_read2_b32 v[{KR+4}:{KR+5}], {T[8]} offset0:64 offset1:80
    ds_read2_b32 v[{KR+6}:{KR+7}], {T[8]} offset0:96 offset1:112
    s_waitcnt lgkmcnt(0)
    v_add_f32 v{KR}, v{KR}, v{KR+1}
    v_add_f32 v{KR+2}, v{KR+2}, v{KR+3}
    v_add_f32 v{KR+4}, v{KR+4}, v{KR+5}
    v_add_f32 v{KR+6}, v{KR+6}, v{KR+7}
    v_add_f32 v{KR}, v{KR}, v{KR+2}
    v_add_f32 v{KR+4}, v{KR+4}, v{KR+6}
    v_add_f32 v{KR+1}, v{KR}, v{KR+4}
    v_mov_b32 v{KR+2}, s64
    v_mov_b32 v{KR+3}, s64
    v_bfi_b32 v{KR}, s65, v{KR+2}, {T[4]}
    v_lshrrev_b32 v{KR+4}, 8, v{KR+2}
    v_bfi_b32 v{KR+1}, s65, v{KR+4}, v{KR+1}
    v_lshrrev_b32 v{KR+4}, 3, {N}
    v_bfe_u32 v{KR+5}, {N}, 2, 1
    v_lshl_add_u32 v{KR+4}, v{KR+5}, 1, v{KR+4}
    v_lshlrev_b32 v{KR+4}, 9, v{KR+4}
    s_lshl_b32 s77, s28, 11
    s_lshl_b32 s31, s29, 4
    s_add_u32 s77, s77, s31
    s_add_u32 s77, s77, {ML_OFF}
    s_mov_b64 exec, 0x1111
    """)
    def store_sel(ins):
        l1 = a.lab("stl"); l2 = a.lab("std")
        a(f"s_cmp_eq_u32 s67, 1\ns_cbranch_scc1 {l1}\n{ins} sc1\ns_branch {l2}\n{l1}:\n{ins}\n{l2}:")
    store_sel(f"buffer_store_dwordx4 {vr(KR)}, v{KR+4}, s[60:63], s77 offen")
    a(f"s_mov_b64 exec, -1\n{lml}:")
    a(f"""
    s_lshl_b32 s81, s68, 3
    s_add_u32 s81, s81, s28
    v_and_b32 {T[8]}, 8, {L}
    v_cmp_eq_u32 vcc, 0, {T[8]}
    v_mov_b32 {T[8]}, s18
    v_mov_b32 {T[9]}, s16
    v_cndmask_b32 {T[8]}, {T[8]}, {T[9]}, vcc
    v_mov_b32 {T[9]}, s19
    v_mov_b32 {T[10]}, s17
    v_cndmask_b32 {T[9]}, {T[9]}, {T[10]}, vcc
    s_lshl_b32 s31, s69, 6
    s_lshl_b32 s82, s30, 3
    s_add_u32 s31, s31, s82                   ; 64cb + 8w
    v_lshl_add_u32 {T[10]}, {KG}, 1, s31
    s_movk_i32 s31, 3584
    v_mul_lo_u32 {T[10]}, {T[10]}, s31
    v_lshl_add_u32 {T[10]}, {L7}, 4, {T[10]}
    s_lshl_b32 s31, s81, 7
    v_add_u32 {T[10]}, s31, {T[10]}
    v_add_co_u32 {T[8]}, vcc, {T[8]}, {T[10]}
    s_nop 1
    v_addc_co_u32 {T[9]}, vcc, 0, {T[9]}, vcc
    s_lshl_b32 s31, s30, 13
    v_lshlrev_b32 {T[10]}, 10, {L3}
    v_lshl_add_u32 {T[10]}, {L7}, 4, {T[10]}
    v_add_u32 {T[10]}, s31, {T[10]}
    s_lshl_b32 s82, s81, 16
    s_lshl_b32 s31, s69, 7
    s_add_u32 s82, s82, s31
    """)
    a.wait_vm("V3")
    a.stamp()
    lnf = a.lab("noffnld")
    a(f"""
    s_cmp_ge_u32 s81, 28
    s_cbranch_scc1 {lnf}
    global_load_dwordx4 {vr(W13)}, v[28:29], off nt
    global_load_dwordx4 {vr(W13+4)}, v[28:29], off offset:3584 nt
    {lnf}:
    """)
    pvm(2, QF, QF+4, False)
    pvm(3, QF+8, QF+12, False)
    a(f"""
    s_lshl_b32 s31, s30, 11
    v_lshlrev_b32 {T[0]}, 4, {L}
    v_add_u32 {T[0]}, s31, {T[0]}
    v_lshrrev_b32 {T[1]}, 8, {TID}
    v_lshlrev_b32 {T[1]}, 8, {T[1]}           ; (head>>1)*256
    v_bfe_u32 {T[2]}, {TID}, 5, 2             ; dim>>5
    v_lshl_add_u32 {T[1]}, {T[2]}, 6, {T[1]}
    v_bfe_u32 {T[2]}, {TID}, 7, 1             ; head&1
    v_lshl_add_u32 {T[1]}, {T[2]}, 5, {T[1]}
    v_lshl_add_u32 {T[1]}, {L7}, 2, {T[1]}
    v_bfe_u32 {T[2]}, {TID}, 3, 2
    v_add_u32 {T[1]}, {T[1]}, {T[2]}
    v_lshlrev_b32 {T[1]}, 2, {T[1]}
    v_lshrrev_b32 {T[2]}, 7, {TID}
    v_lshlrev_b32 {T[2]}, 14, {T[2]}
    v_and_b32 {T[3]}, 127, {TID}
    v_lshl_add_u32 {T[2]}, {T[3]}, 2, {T[2]}
    s_lshl_b32 s77, s28, 16
    s_lshl_b32 s31, s29, 9
    s_add_u32 s77, s77, s31
    s_add_u32 s77, s77, {AP_OFF}
    ds_write_b128 {T[0]}, {vr(ACC)} offset:{LDS_RED}
    ds_write_b128 {T[0]}, {vr(ACC+4)} offset:{LDS_RED+1024}
    s_waitcnt lgkmcnt(0)
    s_barrier
    """)
    for k in range(4):
        a(f"ds_read2st64_b32 v[{QF+2*k}:{QF+2*k+1}], {T[1]} offset0:{16*k} offset1:{16*k+8}")
    a(f"""
    s_waitcnt lgkmcnt(2)
    v_add_f32 v{QF}, v{QF}, v{QF+1}
    v_add_f32 v{QF+2}, v{QF+2}, v{QF+3}
    s_waitcnt lgkmcnt(0)
    v_add_f32 v{QF+4}, v{QF+4}, v{QF+5}
    v_add_f32 v{QF+6}, v{QF+6}, v{QF+7}
    v_add_f32 v{QF}, v{QF}, v{QF+2}
    v_add_f32 v{QF+4}, v{QF+4}, v{QF+6}
    v_add_f32 v{QF}, v{QF}, v{QF+4}
    v_bfi_b32 v{QF}, s65, {VT1L}, v{QF}
    """)
    store_sel(f"buffer_store_dword v{QF}, {T[2]}, s[60:63], s77 offen")
    a.stamp()
    lnf = a.lab("noffnld2")
    a(f"""
    s_cmp_ge_u32 s81, 28
    s_cbranch_scc1 {lnf}
    buffer_load_dwordx4 {vr(W2)}, {T[10]}, s[56:59], s82 offen nt
    {lnf}:
    """)
    a(f"""
    v_lshlrev_b32 {T[0]}, 4, {L7}             ; p8*16
    s_lshl_b32 s77, s28, 11
    s_lshl_b32 s31, s68, 9
    s_add_u32 s77, s77, s31
    s_add_u32 s77, s77, {ML_OFF}
    v_lshlrev_b32 {T[1]}, 9, {L7}             ; p8*512
    v_lshl_add_u32 {T[1]}, {L3}, 3, {T[1]}    ; + rg*8
    s_lshl_b32 s78, s28, 16
    s_lshl_b32 s31, s68, 14
    s_add_u32 s78, s78, s31
    s_lshl_b32 s31, s30, 6
    s_add_u32 s78, s78, s31
    s_add_u32 s78, s78, {AP_OFF}
    s_add_u32 s79, s78, 4096
    s_add_u32 s83, s78, 8192
    s_add_u32 s84, s78, 12288
    """)
    def poll(loads, checks, expect_full=True, pre=None, post_fail=None):
        lp = a.lab("poll"); lo = a.lab("pok")
        a(f"{lp}:")
        for s in loads: a(s)
        a("s_waitcnt vmcnt(0)")
        for s in checks: a(s)
        a(f"""
        s_cmp_eq_u64 exec, -1
        s_mov_b64 exec, -1
        s_cbranch_scc1 {lo}
        s_sub_u32 s97, s97, 1
        s_cbranch_scc1 L_end
        s_sleep 1
        s_branch {lp}
        {lo}:
        """)
        a.vm = []
    poll([f"buffer_load_dwordx4 {vr(KR+4*k)}, {T[0]}, s[60:63], s77 offen offset:{128*k} sc1" for k in range(4)],
         sum([[f"v_cmpx_eq_u32_sdwa vcc, v{KR+4*k}, s64 src0_sel:BYTE_0 src1_sel:BYTE_0",
               f"v_cmpx_eq_u32_sdwa vcc, v{KR+4*k+1}, s64 src0_sel:BYTE_0 src1_sel:BYTE_1",
               f"v_cmpx_eq_u32 vcc, s64, v{KR+4*k+2}"] for k in range(4)], []))
    a.stamp()
    so = ["s78", "s79", "s83", "s84"]
    aploads = [f"buffer_load_dwordx2 v[{QF+2*k}:{QF+2*k+1}], {T[1]}, s[60:63], {so[k]} offen sc1" for k in range(4)]
    for s in aploads: a(s)
    for k in range(4):
        a(f"v_and_b32 v{KR+4*k}, s66, v{KR+4*k}")
        a(f"v_and_b32 v{KR+4*k+1}, s66, v{KR+4*k+1}")
    a(f"""
    v_max3_f32 {T[2]}, v{KR}, v{KR+4}, v{KR+8}
    v_max_f32 {T[2]}, {T[2]}, v{KR+12}
    """)
    dpp_reduce(a, "v_max_f32", [T[2]], [X1, X2, HM])
    a(f"s_mov_b32 s31, {hex(f2u(1.4426950408889634))}")
    for k in range(4):
        a(f"v_sub_f32 v{KR+4*k}, v{KR+4*k}, {T[2]}")
        a(f"v_mul_f32 v{KR+4*k}, s31, v{KR+4*k}")
        a(f"v_exp_f32 v{KR+4*k}, v{KR+4*k}")
    a("s_nop 0")
    a(f"v_mul_f32 {T[3]}, v{KR}, v{KR+1}")
    for k in range(1, 4):
        a(f"v_fmac_f32 {T[3]}, v{KR+4*k}, v{KR+4*k+1}")
    dpp_reduce(a, "v_add_f32", [T[3]], [X1, X2, HM])
    a(f"v_rcp_f32 {T[3]}, {T[3]}\ns_nop 0")
    for k in range(4):
        a(f"v_mul_f32 v{KR+4*k}, v{KR+4*k}, {T[3]}")
    lp = a.lab("appoll"); lc = a.lab("apchk"); lo = a.lab("apok")
    a(f"s_branch {lc}\n{lp}:")
    for s in aploads: a(s)
    a(f"{lc}:\ns_waitcnt vmcnt(0)")
    for k in range(4):
        a(f"v_cmpx_eq_u32_sdwa vcc, v{QF+2*k}, {VT2} src0_sel:BYTE_0 src1_sel:BYTE_0")
        a(f"v_cmpx_eq_u32_sdwa vcc, v{QF+2*k+1}, {VT2} src0_sel:BYTE_0 src1_sel:BYTE_1")
    a(f"""
    s_cmp_eq_u64 exec, -1
    s_mov_b64 exec, -1
    s_cbranch_scc1 {lo}
    s_sub_u32 s97, s97, 1
    s_cbranch_scc1 L_end
    s_sleep 1
    s_branch {lp}
    {lo}:
    """)
    a.stamp()
    for k in range(8):
        a(f"v_and_b32 v{QF+k}, s66, v{QF+k}")
    a(f"v_mul_f32 {T[2]}, v{KR}, v{QF}\nv_mul_f32 {T[3]}, v{KR}, v{QF+1}")
    for k in range(1, 4):
        a(f"v_fmac_f32 {T[2]}, v{KR+4*k}, v{QF+2*k}")
        a(f"v_fmac_f32 {T[3]}, v{KR+4*k}, v{QF+2*k+1}")
    dpp_reduce(a, "v_add_f32", [T[2], T[3]], [X1, X2, HM])
    a(f"v_cvt_pk_bf16_f32 {T[2]}, {T[2]}, {T[2]}\nv_cvt_pk_bf16_f32 {T[3]}, {T[3]}, {T[3]}")
    bfrag(BFa, T[2]); bfrag(BFb, T[3])
    a("s_nop 1")
    a(f"v_mfma_f32_16x16x32_bf16 {vr(ACC)}, {vr(WO)}, {vr(BFa)}, 0")
    a(f"v_mfma_f32_16x16x32_bf16 {vr(ACC)}, {vr(WO+4)}, {vr(BFb)}, {vr(ACC)}")
    a(f"""
    s_lshl_b32 s77, s69, 13
    s_lshl_b32 s31, s28, 10
    s_add_u32 s77, s77, s31
    s_lshl_b32 s31, s68, 8
    s_add_u32 s77, s77, s31
    s_lshl_b32 s31, s30, 5
    s_add_u32 s77, s77, s31
    s_add_u32 s77, s77, {WP_OFF}
    """)
    diag_reduce(LDS_RED2, T[0])
    a(f"""
    v_bfi_b32 {T[0]}, s65, {VT1}, {T[0]}
    s_mov_b32 exec_lo, 0x01010101
    s_mov_b32 exec_hi, 0x01010101
    buffer_store_dword {T[0]}, {T[13]}, s[60:63], s77 offen sc1
    s_mov_b64 exec, -1
    """)
    a.stamp()
    a(f"s_cmp_ge_u32 s81, 28\ns_cbranch_scc1 L_fin")
    a(f"""
    v_lshlrev_b32 {T[1]}, 8, {N}              ; p16*256
    v_lshl_add_u32 {T[1]}, {KG}, 3, {T[1]}
    s_lshl_b32 s77, s69, 13
    s_lshl_b32 s31, s30, 5
    s_add_u32 s77, s77, s31
    s_add_u32 s77, s77, {WP_OFF}
    s_add_u32 s78, s77, 4096
    """)
    poll([f"buffer_load_dwordx2 v[{QF}:{QF+1}], {T[1]}, s[60:63], s77 offen sc1",
          f"buffer_load_dwordx2 v[{QF+2}:{QF+3}], {T[1]}, s[60:63], s78 offen sc1"],
         [f"v_cmpx_eq_u32_sdwa vcc, v{QF+k}, {VT2K} src0_sel:BYTE_0 src1_sel:BYTE_{k&1}" for k in range(4)])
    a.stamp()
    for k in range(4):
        a(f"v_and_b32 v{QF+k}, s66, v{QF+k}")
    a(f"v_add_f32 {H0}, v{QF}, v{QF+2}\nv_add_f32 {H1}, v{QF+1}, v{QF+3}")
    dpp_reduce(a, "v_add_f32", [H0, H1], [X1, X2, HM, RM])
    a(f"""
    v_cvt_pk_bf16_f32 {T[2]}, {H0}, {H1}
    v_lshlrev_b32 {H0}, 16, {T[2]}
    v_and_b32 {H1}, 0xffff0000, {T[2]}
    v_lshlrev_b32 {T[2]}, 16, {XR}
    v_and_b32 {T[3]}, 0xffff0000, {XR}
    v_add_f32 {H0}, {H0}, {T[2]}
    v_add_f32 {H1}, {H1}, {T[3]}
    v_cvt_pk_bf16_f32 {T[2]}, {H0}, {H0}
    v_cvt_pk_bf16_f32 {T[3]}, {H1}, {H1}
    v_and_b32 {H0}, 0xffff0000, {T[2]}
    v_and_b32 {H1}, 0xffff0000, {T[3]}
    v_cmp_gt_u32 vcc, 8, {N}
    v_mov_b32 {T[4]}, 0x3f803f80
    s_nop 0
    v_cndmask_b32 {T[2]}, {T[4]}, {T[2]}, vcc
    v_cndmask_b32 {T[3]}, {T[4]}, {T[3]}, vcc
    """)
    bfrag(BFa, T[2]); bfrag(BFb, T[3])
    a("s_nop 1")
    a(f"v_mfma_f32_16x16x32_bf16 {vr(ACC)}, {vr(W13)}, {vr(BFa)}, 0")
    a(f"v_mfma_f32_16x16x32_bf16 {vr(ACC)}, {vr(W13+4)}, {vr(BFb)}, {vr(ACC)}")
    a(f"""
    v_add_f32 {T[2]}, {H0}, {H1}
    v_mul_f32 {T[3]}, {H0}, {H0}
    v_fmac_f32 {T[3]}, {H1}, {H1}
    """)
    for which in (16, 32):
        a(f"""
        v_mov_b32 {T[4]}, {T[2]}
        v_mov_b32 {T[5]}, {T[3]}
        s_nop 1
        v_permlane{which}_swap_b32 {T[2]}, {T[4]}
        v_permlane{which}_swap_b32 {T[3]}, {T[5]}
        s_nop 1
        v_add_f32 {T[2]}, {T[2]}, {T[4]}
        v_add_f32 {T[3]}, {T[3]}, {T[5]}
        """)
    WS4 = 1040
    a(f"""
    s_mul_i32 s31, s30, {WS4}
    v_lshlrev_b32 {T[4]}, 4, {L}
    v_add_u32 {T[4]}, s31, {T[4]}
    ds_write_b128 {T[4]}, {vr(ACC)} offset:{LDS_RED}
    s_lshl_b32 s31, s30, 3
    v_mov_b32 {T[5]}, s31
    s_mov_b64 exec, 1
    ds_write_b64 {T[5]}, v[22:23] offset:{LDS_STAT}
    s_mov_b64 exec, -1
    v_bfe_u32 {T[5]}, {TID}, 1, 1             ; mat
    v_lshlrev_b32 {T[5]}, 7, {T[5]}           ; mat*128
    v_bfe_u32 {T[6]}, {TID}, 8, 1             ; f>>5
    v_lshl_add_u32 {T[5]}, {T[6]}, 6, {T[5]}
    v_bfe_u32 {T[6]}, {TID}, 2, 1             ; kind
    v_lshl_add_u32 {T[5]}, {T[6]}, 5, {T[5]}
    v_bfe_u32 {T[6]}, {TID}, 3, 3             ; f&7
    v_lshl_add_u32 {T[5]}, {T[6]}, 2, {T[5]}
    v_bfe_u32 {T[6]}, {TID}, 6, 2             ; (f>>3)&3
    v_add_u32 {T[5]}, {T[5]}, {T[6]}
    v_lshlrev_b32 {T[5]}, 2, {T[5]}
    v_and_b32 {T[6]}, 1, {TID}
    s_movk_i32 s31, {4*WS4}
    v_mul_lo_u32 {T[6]}, {T[6]}, s31
    v_add_u32 {T[5]}, {T[5]}, {T[6]}
    v_lshlrev_b32 {T[6]}, 3, {L7}
    v_lshrrev_b32 {T[7]}, 1, {TID}
    v_lshlrev_b32 {T[7]}, 2, {T[7]}
    s_lshl_b32 s77, s81, 13
    s_lshl_b32 s31, s69, 10
    s_add_u32 s77, s77, s31
    s_add_u32 s77, s77, {FP_OFF}
    v_bfe_u32 {T[8]}, {TID}, 1, 2             ; kind4
    v_lshlrev_b32 {T[8]}, 3, {T[8]}
    v_lshrrev_b32 {T[8]}, {T[8]}, s64
    s_waitcnt lgkmcnt(0)
    s_barrier
    """)
    for k in range(4):
        a(f"ds_read_b32 v{QF+k}, {T[5]} offset:{LDS_RED + k*WS4}")
    a(f"ds_read_b64 v[{QF+4}:{QF+5}], {T[6]} offset:{LDS_STAT}")
    a(f"""
    s_waitcnt lgkmcnt(1)
    v_add_f32 v{QF}, v{QF}, v{QF+1}
    v_add_f32 v{QF+2}, v{QF+2}, v{QF+3}
    v_add_f32 v{QF}, v{QF}, v{QF+2}
    s_nop 1
    v_add_f32_dpp v{QF}, v{QF}, v{QF} {X1}
    v_bfi_b32 v{QF}, s65, {T[8]}, v{QF}
    s_mov_b32 exec_lo, 0x55555555
    s_mov_b32 exec_hi, 0x55555555
    """)
    store_sel(f"buffer_store_dword v{QF}, {T[7]}, s[60:63], s77 offen")
    a("s_mov_b64 exec, -1")
    lst = a.lab("nost")
    a(f"""
    s_cmp_lg_u32 s30, 0
    s_cbranch_scc1 {lst}
    s_waitcnt lgkmcnt(0)
    """)
    dpp_reduce(a, "v_add_f32", [f"v{QF+4}", f"v{QF+5}"], [X1, X2, HM])
    a(f"""
    v_mov_b32 v{QF+6}, s64
    v_mov_b32 v{QF+7}, s64
    v_bfi_b32 v{QF+4}, s65, v{QF+6}, v{QF+4}
    v_lshrrev_b32 {T[8]}, 8, v{QF+6}
    v_bfi_b32 v{QF+5}, s65, {T[8]}, v{QF+5}
    s_lshl_b32 s77, s81, 7
    s_lshl_b32 s31, s69, 4
    s_add_u32 s77, s77, s31
    s_add_u32 s77, s77, {ST_OFF}
    v_mov_b32 {T[8]}, 0
    s_mov_b64 exec, 1
    """)
    store_sel(f"buffer_store_dwordx4 {vr(QF+4)}, {T[8]}, s[60:63], s77 offen")
    a(f"s_mov_b64 exec, -1\n{lst}:\ns_waitcnt lgkmcnt(0)")
    a.stamp()
    a(f"""
    v_lshlrev_b32 {T[2]}, 10, {L7}            ; p*1024
    v_lshl_add_u32 {T[2]}, {L3}, 4, {T[2]}    ; + fi*16
    s_lshl_b32 s77, s81, 13
    s_lshl_b32 s31, s30, 7
    s_add_u32 s77, s77, s31
    s_add_u32 s77, s77, {FP_OFF}
    v_lshlrev_b32 {T[3]}, 4, {L7}
    s_lshl_b32 s78, s81, 7
    s_add_u32 s78, s78, {ST_OFF}
    """)
    poll([f"buffer_load_dwordx4 {vr(QF)}, {T[2]}, s[60:63], s77 offen sc1",
          f"buffer_load_dwordx4 {vr(QF+4)}, {T[3]}, s[60:63], s78 offen sc1"],
         [f"v_cmpx_eq_u32_sdwa vcc, v{QF+k}, s64 src0_sel:BYTE_0 src1_sel:BYTE_{k}" for k in range(4)] +
         [f"v_cmpx_eq_u32_sdwa vcc, v{QF+4}, s64 src0_sel:BYTE_0 src1_sel:BYTE_0",
          f"v_cmpx_eq_u32_sdwa vcc, v{QF+5}, s64 src0_sel:BYTE_0 src1_sel:BYTE_1",
          f"v_cmpx_eq_u32 vcc, s64, v{QF+6}"])
    a.stamp()
    R6 = [f"v{QF+k}" for k in range(6)]
    for r in R6: a(f"v_and_b32 {r}, s66, {r}")
    a("s_nop 1")
    dpp_reduce(a, "v_add_f32", R6, [X1, X2, HM])
    a(f"""
    v_mul_f32 {R6[4]}, {hex(f2u(1.0/512))}, {R6[4]}     ; mean
    v_mul_f32 {R6[5]}, {hex(f2u(1.0/512))}, {R6[5]}
    v_fma_f32 {R6[5]}, -{R6[4]}, {R6[4]}, {R6[5]}       ; var
    v_max_f32 {R6[5]}, 0, {R6[5]}
    """)
    ln_finish(R6[4], R6[5])
    a(f"""
    v_fma_f32 {R6[0]}, -{R6[4]}, {R6[2]}, {R6[0]}
    v_fma_f32 {R6[1]}, -{R6[4]}, {R6[3]}, {R6[1]}
    v_mul_f32 {R6[0]}, {R6[0]}, {R6[5]}
    v_mul_f32 {R6[1]}, {R6[1]}, {R6[5]}
    v_cvt_pk_bf16_f32 {T[2]}, {R6[0]}, {R6[1]}
    v_lshlrev_b32 {R6[0]}, 16, {T[2]}          ; gate
    v_and_b32 {R6[1]}, 0xffff0000, {T[2]}      ; up
    v_mul_f32 {T[2]}, {hex(f2u(-1.4426950408889634))}, {R6[0]}
    v_exp_f32 {T[2]}, {T[2]}
    s_nop 0
    v_add_f32 {T[2]}, 1.0, {T[2]}
    v_rcp_f32 {T[2]}, {T[2]}
    s_nop 0
    v_mul_f32 {T[2]}, {R6[0]}, {T[2]}          ; silu
    """)
    bf16r(a, T[2], T[2])
    a(f"""
    v_mul_f32 {T[2]}, {T[2]}, {R6[1]}
    v_cvt_pk_bf16_f32 {T[2]}, {T[2]}, {T[2]}
    """)
    bfrag(BFa, T[2])
    a("s_nop 1")
    a(f"v_mfma_f32_16x16x32_bf16 {vr(ACC)}, {vr(W2)}, {vr(BFa)}, 0")
    a(f"""
    s_lshl_b32 s77, s69, 13
    s_lshl_b32 s31, s81, 8
    s_add_u32 s77, s77, s31
    s_lshl_b32 s31, s30, 5
    s_add_u32 s77, s77, s31
    s_add_u32 s77, s77, {OP_OFF}
    """)
    diag_reduce(LDS_RED2, T[0])
    a(f"""
    v_bfi_b32 {T[0]}, s65, {VT1}, {T[0]}
    s_mov_b32 exec_lo, 0x01010101
    s_mov_b32 exec_hi, 0x01010101
    buffer_store_dword {T[0]}, {T[13]}, s[60:63], s77 offen sc1
    s_mov_b64 exec, -1
    """)
    a.stamp()
    a(f"""
    s_cmp_lg_u32 s29, s28
    s_cbranch_scc1 L_fin
    s_lshl_b32 s77, s69, 13
    s_lshl_b32 s31, s30, 5
    s_add_u32 s77, s77, s31
    s_add_u32 s77, s77, {OP_OFF}
    s_add_u32 s78, s77, 4096
    v_mov_b32 v{QF+2}, 0
    v_mov_b32 v{QF+3}, 0
    """)
    lp = a.lab("opoll"); lo = a.lab("ook")
    a(f"""
    {lp}:
    buffer_load_dwordx2 v[{QF}:{QF+1}], {T[1]}, s[60:63], s77 offen sc1
    s_mov_b32 exec_lo, 0x0fff0fff
    s_mov_b32 exec_hi, 0x0fff0fff
    buffer_load_dwordx2 v[{QF+2}:{QF+3}], {T[1]}, s[60:63], s78 offen sc1
    s_waitcnt vmcnt(0)
    v_cmpx_eq_u32_sdwa vcc, v{QF+2}, {VT2K} src0_sel:BYTE_0 src1_sel:BYTE_0
    v_cmpx_eq_u32_sdwa vcc, v{QF+3}, {VT2K} src0_sel:BYTE_0 src1_sel:BYTE_1
    s_or_b32 exec_lo, exec_lo, 0xf000f000
    s_or_b32 exec_hi, exec_hi, 0xf000f000
    v_cmpx_eq_u32_sdwa vcc, v{QF}, {VT2K} src0_sel:BYTE_0 src1_sel:BYTE_0
    v_cmpx_eq_u32_sdwa vcc, v{QF+1}, {VT2K} src0_sel:BYTE_0 src1_sel:BYTE_1
    s_cmp_eq_u64 exec, -1
    s_mov_b64 exec, -1
    s_cbranch_scc1 {lo}
    s_sub_u32 s97, s97, 1
    s_cbranch_scc1 L_end
    s_sleep 1
    s_branch {lp}
    {lo}:
    """)
    a.stamp()
    for k in range(4):
        a(f"v_and_b32 v{QF+k}, s66, v{QF+k}")
    a(f"v_add_f32 {T[2]}, v{QF}, v{QF+2}\nv_add_f32 {T[3]}, v{QF+1}, v{QF+3}")
    dpp_reduce(a, "v_add_f32", [T[2], T[3]], [X1, X2, HM, RM])
    a(f"""
    v_cvt_pk_bf16_f32 {T[4]}, {T[2]}, {T[3]}
    v_lshlrev_b32 {T[2]}, 16, {T[4]}
    v_and_b32 {T[3]}, 0xffff0000, {T[4]}
    v_add_f32 {T[2]}, {T[2]}, {H0}
    v_add_f32 {T[3]}, {T[3]}, {H1}
    v_cvt_pk_bf16_f32 {T[2]}, {T[2]}, {T[3]}
    v_lshlrev_b32 {T[3]}, 2, {KG}
    s_lshl_b32 s77, s69, 7
    s_lshl_b32 s31, s30, 4
    s_add_u32 s77, s77, s31
    s_mov_b32 exec_lo, 0x00010001
    s_mov_b32 exec_hi, 0x00010001
    buffer_store_dword {T[2]}, {T[3]}, s[52:55], s77 offen
    s_mov_b64 exec, -1
    s_cmp_lg_u32 s2, 0
    s_cbranch_scc1 L_fin
    s_cmp_lg_u32 s30, 0
    s_cbranch_scc1 L_fin
    v_mov_b32 {T[2]}, s64
    v_mov_b32 {T[3]}, 0
    s_mov_b64 exec, 1
    buffer_store_dword {T[2]}, {T[3]}, s[60:63], 0 offen sc1
    s_mov_b64 exec, -1
    L_fin:
    """)
    if stamps:
        a.stamp()
        a(f"""
        s_lshl_b32 s77, s2, 10
        s_lshl_b32 s31, s30, 7
        s_add_u32 s77, s77, s31
        s_add_u32 s77, s77, {TS_OFF}
        v_lshlrev_b32 {T[0]}, 2, {L}
        s_mov_b32 exec_lo, -1
        s_mov_b32 exec_hi, 0
        buffer_store_dword v127, {T[0]}, s[60:63], s77 offen
        """)
    a("L_end:\ns_endpgm")
    return wrap_single(a.text(), 256, 512, LDS_SIZE, NV)

if __name__ == "__main__":
    open("k1.s", "w").write(gen(False))
    open("k1_ts.s", "w").write(gen(True))
```

```python
import sys, struct
from asmlib import *

E_OFF   = 0x0
QPL_OFF = 0x1000
QXL_OFF = 0x11000
GCOPY   = 0x180000
ML_OFF  = 0x12000
AP_OFF  = 0x20000
WP_OFF  = 0xA0000
FP_OFF  = 0xB0000
ST_OFF  = 0xF0000
OP_OFF  = 0x100000
TS_OFF  = 0x200000

LDS_RED  = 0
LDS_Q    = 20480
LDS_MX   = 21504
LDS_L    = 22016
LDS_STAT = 22528
LDS_X    = 23808
LDS_RED2 = 24832
LDS_SIZE = 36864

TAGC = 0x9E3779B9
SCALE = 0.08838834764831845
LOG2E = 1.4426950408889634
def f2u(x): return struct.unpack("<I", struct.pack("<f", x))[0]

class G(Asm):
    def __init__(self, stamps=False):
        super().__init__()
        self.vm = []
        self.stamps = stamps
        self.names = []
        self.uid = 0
    def vmem(self, name, ins):
        self(ins); self.vm.append(name)
    def wait_vm(self, name):
        idx = max(i for i, n in enumerate(self.vm) if n == name)
        n_after = len(self.vm) - 1 - idx
        self(f"s_waitcnt vmcnt({n_after})")
        self.vm = self.vm[idx+1:]
    def stamp(self, name):
        if self.stamps and (self.stamps is True or name in self.stamps):
            k = len(self.names); self.names.append(name)
            assert k < 32
            self(f"s_memrealtime s[98:99]\ns_waitcnt lgkmcnt(0)\nv_writelane_b32 v135, s98, {k}")
    def lab(self, base):
        self.uid += 1
        return f"L_{base}_{self.uid}"

DPP = "row_mask:0xf bank_mask:0xf"
X1 = f"quad_perm:[1,0,3,2] {DPP}"
X2 = f"quad_perm:[2,3,0,1] {DPP}"
HM = f"row_half_mirror {DPP}"
RM = f"row_mirror {DPP}"
def ROR(n): return f"row_ror:{n} {DPP}"

def dpp_reduce(a, op, regs, steps):
    for st in steps:
        if len(regs) == 1: a("s_nop 1")
        elif len(regs) == 2: a("s_nop 0")
        for r in regs:
            a(f"{op}_dpp {r}, {r}, {r} {st}")

def swap_reduce(a, op, r, t, which):
    a(f"v_mov_b32 {t}, {r}")
    a("s_nop 1")
    a(f"v_permlane{which}_swap_b32 {r}, {t}")
    a(f"{op} {r}, {r}, {t}")

def swap_reduce2(a, op, r0, r1, t0, t1, which):
    a(f"""
    v_mov_b32 {t0}, {r0}
    v_mov_b32 {t1}, {r1}
    s_nop 0
    v_permlane{which}_swap_b32 {r0}, {t0}
    v_permlane{which}_swap_b32 {r1}, {t1}
    {op} {r0}, {r0}, {t0}
    {op} {r1}, {r1}, {t1}
    """)

def bf16r(a, dst, src):
    a(f"v_cvt_pk_bf16_f32 {dst}, {src}, {src}")
    a(f"v_and_b32 {dst}, 0xffff0000, {dst}")

def gen(stamps=False, opt=None):
    opt = opt or {}
    SLEEP = opt.get("sleep", 0)
    a = G(stamps)
    TID="v0"; L="v1"; L7="v2"; L3="v3"; KG="v4"; N="v5"
    M=["v6","v7","v8","v9"]
    VT1="v10"
    VT1L="v11"
    PUB_RD="v12"; PUB_ST="v13"; PUB_TAG="v14"
    XR="v15"
    H="v16"
    A_RW="v17"; G_PC="v18"; VOFF="v19"
    T=[f"v{i}" for i in range(20, 36)]
    WQ=36; KR=44; VR=60; WO=76; W13=84; W2=92; QF=96; ACC=112
    BFa = 120; BFb = 124
    QKEEP = H
    NV = 136 if stamps else 128
    def vr(b, n=4): return f"v[{b}:{b+n-1}]"
    def srd(base, lo, size):
        a(f"s_mov_b32 s{base}, s{lo}\ns_mov_b32 s{base+1}, s{lo+1}\ns_mov_b32 s{base+2}, {size}\ns_mov_b32 s{base+3}, 0x20000")
    def budget():
        a(f"s_sub_u32 s97, s97, 1\ns_cbranch_scc1 L_end")
        if SLEEP: a(f"s_sleep {SLEEP}")
    def bfrag(base, dup):
        for j in range(4):
            a(f"v_and_b32 v{base+j}, {dup}, {M[j]}")
    def store_sel(ins):
        l1 = a.lab("stl"); l2 = a.lab("std")
        a(f"s_cbranch_scc1 {l1}\n{ins} sc1\ns_branch {l2}\n{l1}:\n{ins}\n{l2}:")
    LOCAL = "s_cmp_eq_u32 s67, 1"

    a(f"""
    s_cmp_ge_u32 s2, 256
    s_cbranch_scc1 L_end
    s_load_dwordx16 s[4:19], s[0:1], 0
    s_load_dwordx8 s[20:27], s[0:1], 64
    s_and_b32 s28, s2, 7                     ; g
    s_lshr_b32 s29, s2, 3                    ; j
    v_and_b32 {L}, 63, {TID}
    v_lshrrev_b32 {T[0]}, 6, {TID}
    v_and_b32 {L7}, 7, {L}
    v_readfirstlane_b32 s30, {T[0]}          ; w
    v_lshrrev_b32 {L3}, 3, {L}
    v_lshrrev_b32 {KG}, 4, {L}
    v_and_b32 {N}, 15, {L}
    s_lshr_b32 s68, s29, 3
    s_and_b32 s69, s29, 7                    ; cb = j&7
    s_lshl_b32 s70, s68, 20
    s_lshl_b32 s31, s28, 10
    s_add_u32 s70, s70, s31
    s_lshl_b32 s31, s69, 7
    s_add_u32 s70, s70, s31
    s_add_u32 s71, s70, 8192
    s_lshl_b32 s31, s30, 4                   ; 16w
    v_lshl_add_u32 {T[0]}, {L3}, 1, s31
    v_lshlrev_b32 {T[1]}, 13, {T[0]}
    v_lshl_add_u32 {T[1]}, {L7}, 4, {T[1]}
    v_lshlrev_b32 {T[3]}, 4, {L}             ; T3 = lane*16
    """)
    if stamps: a("v_mov_b32 v135, 0")
    if opt.get("codepf", True):
        lc = a.lab("nocpf")
        a(f"""
        s_cmp_lg_u32 s30, 7
        s_cbranch_scc1 {lc}
        s_getpc_b64 s[84:85]
        L_pcbase:
        s_lshl_b32 s31, s29, 9
        v_lshlrev_b32 {T[8]}, 7, {L}
        v_add_u32 {T[8]}, s31, {T[8]}
        v_cmp_gt_u32 vcc, L_end-L_pcbase, {T[8]}
        s_and_b64 exec, vcc, 0xf
        s_cbranch_execz L_cpf_skip
        global_load_dword v88, {T[8]}, s[84:85]
        L_cpf_skip:
        s_mov_b64 exec, -1
        {lc}:
        """)
    a("s_waitcnt lgkmcnt(0)")
    a.stamp("start")
    srd(40, 10, 0x400000)
    srd(48, 4, 1024)
    srd(60, 26, 0x20000000)
    lx = a.lab("nox")
    a(f"""
    s_cmp_lg_u32 s30, 0
    s_cbranch_scc1 {lx}
    v_mov_b32 {T[11]}, 0
    buffer_load_dword {XR}, {T[11]}, s[60:63], 0 offen sc1
    buffer_load_dwordx4 v[32:35], {T[3]}, s[48:51], 0 offen
    {lx}:
    """)
    a.vmem("WQ0", f"buffer_load_dwordx4 {vr(WQ)}, {T[1]}, s[40:43], s70 offen nt")
    a.vmem("WQ1", f"buffer_load_dwordx4 {vr(WQ+4)}, {T[1]}, s[40:43], s71 offen nt")
    srd(32, 6, 0x8000000)
    a(f"""
    s_lshl_b32 s72, s28, 24
    s_lshl_b32 s31, s29, 15
    s_add_u32 s72, s72, s31
    s_add_u32 s72, s72, {61440*256}          ; s72 = K/V soffset
    s_lshl_b32 s31, s30, 12
    v_lshlrev_b32 {T[6]}, 8, {N}
    v_lshl_add_u32 {T[6]}, {KG}, 4, {T[6]}
    v_add_u32 {T[6]}, s31, {T[6]}            ; T6 = K voffset
    v_lshlrev_b32 {T[7]}, 10, {KG}
    v_lshl_add_u32 {T[7]}, {N}, 4, {T[7]}
    v_add_u32 {VOFF}, s31, {T[7]}            ; V voffset
    s_barrier
    """)
    a.vmem("K0", f"buffer_load_dwordx4 {vr(KR)}, {T[6]}, s[32:35], s72 offen nt")
    a.vmem("K1", f"buffer_load_dwordx4 {vr(KR+4)}, {T[6]}, s[32:35], s72 offen offset:64 nt")
    K23 = [f"buffer_load_dwordx4 {vr(KR+8)}, {T[6]}, s[32:35], s72 offen offset:128 nt",
           f"buffer_load_dwordx4 {vr(KR+12)}, {T[6]}, s[32:35], s72 offen offset:192 nt"]
    srd(36, 8, 0x8000000)
    srd(44, 12, 0x400000)
    srd(52, 22, 1024)
    srd(56, 20, 1792*512*2)
    a(f"""
    s_mov_b32 s65, 0xff
    s_mov_b32 s66, 0xffffff00
    s_mov_b32 s97, 0x200000
    v_and_b32 {T[8]}, 1, {L}
    v_cmp_eq_u32 vcc, 1, {T[8]}
    v_mov_b32 {T[9]}, 0xffff
    v_mov_b32 {T[10]}, 0xffff0000
    v_cndmask_b32 {T[9]}, {T[9]}, {T[10]}, vcc
    v_bfe_u32 {T[8]}, {L}, 1, 2
    """)
    for j in range(4):
        a(f"v_cmp_eq_u32 vcc, {j}, {T[8]}")
        a("s_nop 1")
        a(f"v_cndmask_b32 {M[j]}, 0, {T[9]}, vcc")
    a(f"""
    s_mul_i32 s31, s30, 528
    v_lshlrev_b32 {A_RW}, 7, {KG}
    v_lshl_add_u32 {A_RW}, {L7}, 4, {A_RW}
    v_add_u32 {A_RW}, s31, {A_RW}
    s_lshr_b32 s31, s30, 2
    s_lshl_b32 s31, s31, 5
    s_and_b32 s75, s30, 3
    s_add_u32 s31, s31, s75
    s_lshl_b32 s31, s31, 2
    s_movk_i32 s75, 528
    v_mul_lo_u32 {T[5]}, {L7}, s75
    v_lshl_add_u32 {T[5]}, {L3}, 4, {T[5]}
    v_add_u32 {T[5]}, s31, {T[5]}
    s_getreg_b32 s76, hwreg(HW_REG_XCC_ID)
    s_and_b32 s76, s76, 15
    s_lshl_b32 s31, s68, 8
    v_lshl_add_u32 {T[2]}, {T[0]}, 1, s31
    s_lshr_b32 s95, s30, 2
    s_lshl_b32 s95, s95, 5
    s_and_b32 s75, s30, 3
    s_lshl_b32 s75, s75, 1
    s_add_u32 s95, s95, s75
    s_lshl_b32 s75, s69, 6
    s_add_u32 s95, s95, s75
    s_lshl_b32 s31, s95, 1
    v_and_b32 {T[4]}, 1, {L}
    v_lshlrev_b32 {T[4]}, 1, {T[4]}
    v_lshl_add_u32 {T[4]}, {KG}, 4, {T[4]}
    v_add_u32 {T[4]}, s31, {T[4]}
    v_lshrrev_b32 {PUB_ST}, 2, {L}
    v_lshlrev_b32 {PUB_ST}, 4, {PUB_ST}
    v_and_b32 {T[8]}, 3, {L}
    s_movk_i32 s31, {2*528}
    v_mul_lo_u32 {T[8]}, {T[8]}, s31
    v_add_u32 {PUB_RD}, {PUB_ST}, {T[8]}
    v_lshrrev_b32 {T[8]}, 1, {L}
    v_lshlrev_b32 {G_PC}, 8, {T[8]}
    v_and_b32 {T[8]}, 1, {L}
    v_lshl_add_u32 {G_PC}, {T[8]}, 4, {G_PC}
    s_lshl_b32 s31, s30, 5
    v_add_u32 {G_PC}, s31, {G_PC}
    s_lshl_b32 s86, s28, 13
    s_lshl_b32 s31, s68, 11
    s_add_u32 s86, s86, s31
    s_lshl_b32 s31, s69, 8
    s_add_u32 s86, s86, s31
    s_lshl_b32 s31, s30, 5
    s_add_u32 s86, s86, s31
    s_add_u32 s86, s86, {QPL_OFF}
    s_lshl_b32 s31, s28, 8
    s_lshl_b32 s87, s29, 3
    s_add_u32 s87, s87, s31
    s_add_u32 s87, s87, {QXL_OFF}
    s_lshl_b32 s81, s68, 3
    s_add_u32 s81, s81, s28
    """)
    lln = a.lab("noln"); lln2 = a.lab("lndone")
    a(f"s_cmp_eq_u32 s30, 0\ns_cbranch_scc1 {lln}")
    for k in K23: a(k)
    a(f"s_branch {lln2}\n{lln}:\ns_waitcnt vmcnt(4)")
    U = [f"v{QF+i}" for i in range(8)]
    for i in range(4):
        a(f"v_lshlrev_b32 {U[2*i]}, 16, v{32+i}")
        a(f"v_and_b32 {U[2*i+1]}, 0xffff0000, v{32+i}")
    a(f"""
    v_add_f32 {T[8]}, {U[0]}, {U[1]}
    v_mul_f32 {T[9]}, {U[0]}, {U[0]}
    v_add_f32 {T[10]}, {U[2]}, {U[3]}
    v_mul_f32 {T[11]}, {U[1]}, {U[1]}
    v_add_f32 {T[8]}, {T[8]}, {U[4]}
    v_fmac_f32 {T[9]}, {U[2]}, {U[2]}
    v_add_f32 {T[10]}, {T[10]}, {U[5]}
    v_fmac_f32 {T[11]}, {U[3]}, {U[3]}
    v_add_f32 {T[8]}, {T[8]}, {U[6]}
    v_fmac_f32 {T[9]}, {U[4]}, {U[4]}
    v_add_f32 {T[10]}, {T[10]}, {U[7]}
    v_fmac_f32 {T[11]}, {U[5]}, {U[5]}
    v_fmac_f32 {T[9]}, {U[6]}, {U[6]}
    v_fmac_f32 {T[11]}, {U[7]}, {U[7]}
    v_add_f32 {T[8]}, {T[8]}, {T[10]}
    v_add_f32 {T[9]}, {T[9]}, {T[11]}
    ds_write_b128 {T[3]}, v[32:35] offset:{LDS_X}
    """)
    dpp_reduce(a, "v_add_f32", [T[8], T[9]], [X1, X2, HM, RM])
    swap_reduce2(a, "v_add_f32", T[8], T[9], T[10], T[11], 16)
    swap_reduce2(a, "v_add_f32", T[8], T[9], T[10], T[11], 32)
    def ln_finish(mean, var):
        a(f"""
        v_mul_f32 {mean}, {hex(f2u(1.0/512))}, {mean}
        v_mul_f32 {var}, {hex(f2u(1.0/512))}, {var}
        v_fma_f32 {var}, -{mean}, {mean}, {var}
        v_max_f32 {var}, 0, {var}
        v_cvt_pk_bf16_f32 {var}, {var}, {mean}
        v_and_b32 {mean}, 0xffff0000, {var}
        v_lshlrev_b32 {var}, 16, {var}
        v_add_f32 {var}, {hex(f2u(1e-5))}, {var}
        """)
        bf16r(a, var, var)
        a(f"v_sqrt_f32 {var}, {var}")
        a("s_nop 0")
        bf16r(a, var, var)
        a(f"v_rcp_f32 {var}, {var}")
    ln_finish(T[8], T[9])
    a(f"""
    v_mov_b32 {T[10]}, {XR}
    v_mov_b32 {T[11]}, 0
    ds_write_b96 {T[11]}, v[28:30] offset:{LDS_STAT}
    """)
    for k in K23: a(k)
    a(f"{lln2}:")
    a.vm += ["K2", "K3"]
    a(f"""
    v_lshlrev_b32 {T[13]}, 2, {L3}
    v_mov_b32 {T[11]}, 0
    s_waitcnt lgkmcnt(0)
    s_barrier
    ds_read_b96 v[28:30], {T[11]} offset:{LDS_STAT}
    ds_read_b32 {T[3]}, {T[2]} offset:{LDS_X}
    ds_read_u16 {XR}, {T[4]} offset:{LDS_X}
    s_waitcnt lgkmcnt(1)
    v_lshlrev_b32 {T[2]}, 16, {T[3]}
    v_and_b32 {T[3]}, 0xffff0000, {T[3]}
    v_sub_f32 {T[2]}, {T[2]}, {T[8]}
    v_sub_f32 {T[3]}, {T[3]}, {T[8]}
    v_cvt_pk_bf16_f32 {T[3]}, {T[2]}, {T[3]}
    v_lshlrev_b32 {T[2]}, 16, {T[3]}
    v_and_b32 {T[3]}, 0xffff0000, {T[3]}
    v_mul_f32 {T[2]}, {T[2]}, {T[9]}
    v_mul_f32 {T[3]}, {T[3]}, {T[9]}
    v_cvt_pk_bf16_f32 {T[2]}, {T[2]}, {T[2]}
    v_cvt_pk_bf16_f32 {T[3]}, {T[3]}, {T[3]}
    """)
    a.stamp("ln")
    bfrag(BFa, T[2]); bfrag(BFb, T[3])
    a.wait_vm("WQ1")
    a.stamp("wq")
    a(f"v_mfma_f32_16x16x32_bf16 {vr(ACC)}, {vr(WQ)}, {vr(BFa)}, 0")
    a(f"v_mfma_f32_16x16x32_bf16 {vr(ACC)}, {vr(WQ+4)}, {vr(BFb)}, {vr(ACC)}")
    a(f"""
    v_readfirstlane_b32 s64, {T[10]}
    s_add_u32 s64, s64, {TAGC}
    v_and_b32 {T[8]}, 3, {L3}
    v_lshlrev_b32 {T[8]}, 3, {T[8]}
    v_lshrrev_b32 {VT1}, {T[8]}, s64
    s_nop 2
    """)
    def diag_write(ldsbase):
        a("s_mov_b32 exec_lo, 0x00ff00ff\ns_mov_b32 exec_hi, 0xff00ff00")
        a(f"ds_write_b128 {A_RW}, {vr(ACC)} offset:{ldsbase}")
        a("s_mov_b64 exec, -1")
        a("s_waitcnt lgkmcnt(0)\ns_barrier")
    diag_write(LDS_RED)
    a(f"""
    ds_read_b32 {T[14]}, {T[5]} offset:{LDS_RED}
    ds_read_b32 {T[15]}, {T[5]} offset:{LDS_RED+256}
    s_waitcnt lgkmcnt(0)
    v_add_f32 {QKEEP}, {T[14]}, {T[15]}
    """)
    dpp_reduce(a, "v_add_f32", [QKEEP], [X1, X2, HM])
    a(f"v_bfi_b32 {QKEEP}, s65, {VT1}, {QKEEP}")
    def qpublish(flags, add, main):
        a(f"""
        s_add_u32 s92, s86, {add}
        s_mov_b32 exec_lo, 0x01010101
        s_mov_b32 exec_hi, 0x01010101
        """)
        ins = f"buffer_store_dword {QKEEP}, {T[13]}, s[60:63], s92 offen {flags}"
        if main: a.vmem("STQ", ins)
        else: a(ins)
        lq = a.lab("noqx")
        a(f"""
        s_mov_b64 exec, -1
        s_cmp_lg_u32 s30, 0
        s_cbranch_scc1 {lq}
        v_mov_b32 v{ACC}, s76
        v_mov_b32 v{ACC+1}, s64
        v_mov_b32 v{ACC+2}, 0
        s_add_u32 s92, s87, {add}
        s_mov_b64 exec, 1
        buffer_store_dwordx2 v[{ACC}:{ACC+1}], v{ACC+2}, s[60:63], s92 offen {flags}
        s_mov_b64 exec, -1
        {lq}:
        """)
    qpublish("", 0, True)
    a.stamp("qpub")
    a("s_barrier")
    VL = [f"buffer_load_dwordx4 {vr(VR+4*r)}, {VOFF}, s[36:39], s72 offen offset:{256*r} nt" for r in range(4)]
    a.vmem("V0", VL[0])
    a(f"""
    v_lshlrev_b32 {XR}, 16, {XR}
    v_and_b32 {T[8]}, 3, {L}
    v_lshlrev_b32 {T[8]}, 3, {T[8]}
    v_lshrrev_b32 {VT1L}, {T[8]}, s64
    v_bfe_u32 {T[8]}, {L}, 1, 2
    v_lshlrev_b32 {T[8]}, 3, {T[8]}
    v_lshrrev_b32 {PUB_TAG}, {T[8]}, s64
    v_lshlrev_b32 {T[4]}, 2, {TID}            ; col t*4
    s_lshl_b32 s77, s28, 13
    s_add_u32 s77, s77, {QPL_OFF}
    s_add_u32 s78, s77, 4096
    v_and_b32 {T[5]}, 31, {L}
    v_lshlrev_b32 {T[5]}, 3, {T[5]}
    s_lshl_b32 s79, s28, 8
    s_add_u32 s79, s79, {QXL_OFF}
    s_mov_b32 s88, {opt.get("local_tries", 64)}
    s_mov_b32 s89, 0
    """)
    QD = ["v92", "v93", "v94", "v95"]
    def qpoll(tag):
        ins = [
          f"buffer_load_dword {QD[0]}, {T[4]}, s[60:63], s77 offen sc1",
          f"buffer_load_dword {QD[1]}, {T[4]}, s[60:63], s77 offen offset:2048 sc1",
          f"buffer_load_dword {QD[2]}, {T[4]}, s[60:63], s78 offen sc1",
          f"buffer_load_dword {QD[3]}, {T[4]}, s[60:63], s78 offen offset:2048 sc1",
          f"buffer_load_dwordx2 v[90:91], {T[5]}, s[60:63], s79 offen sc1",
        ]
        for i, s_ in enumerate(ins):
            if tag: a.vmem(f"{tag}{i}", s_)
            else: a(s_)
    qsched = opt.get("qsched", [("K2", "A", [1]), ("K3", "B", [2, 3])])
    for (after, tag, vs) in qsched:
        a.wait_vm(after)
        qpoll("QP" + tag)
        a("s_barrier")
        for r in vs: a.vmem(f"V{r}", VL[r])
    a.stamp("k3")
    A_WO="v36"; A_QW="v37"; A_QR="v38"; A_N4="v39"; A_MXW="v40"; A_W13L="v42"; A_W13H="v43"; A_MXR="v41"
    A_W2=VOFF
    A_OW=T[10]; A_OR=T[11]; A_APST=T[12]; A_APTAG=T[14]
    a(f"""
    s_lshl_b32 s31, s30, 14
    v_lshlrev_b32 {A_WO}, 11, {L3}
    v_lshl_add_u32 {A_WO}, {L7}, 4, {A_WO}
    v_add_u32 {A_WO}, s31, {A_WO}
    s_lshl_b32 s80, s28, 19
    s_lshl_b32 s31, s68, 17
    s_add_u32 s80, s80, s31
    s_lshl_b32 s31, s69, 7
    s_add_u32 s80, s80, s31
    v_lshlrev_b32 {A_QW}, 1, {TID}
    v_lshrrev_b32 {A_QR}, 3, {N}
    v_bfe_u32 {T[8]}, {N}, 2, 1
    v_lshl_add_u32 {A_QR}, {T[8]}, 1, {A_QR}  ; head(n)
    v_lshlrev_b32 {T[15]}, 9, {A_QR}
    v_lshlrev_b32 {A_QR}, 8, {A_QR}
    v_lshl_add_u32 {A_QR}, {KG}, 4, {A_QR}
    s_lshl_b32 s31, s30, 6
    v_lshlrev_b32 {A_N4}, 2, {N}
    v_add_u32 {A_MXW}, s31, {A_N4}
    v_add_u32 {A_MXR}, {LDS_MX}, {A_N4}
    ; w13 per-lane address: base(l&8 ? w3 : w1) + (64cb + 8w + kg)*3584 + fbk*128 + l7*16   (second load +4 rows)
    v_and_b32 {T[8]}, 8, {L}
    v_cmp_eq_u32 vcc, 0, {T[8]}
    v_mov_b32 {T[8]}, s18
    v_mov_b32 {T[9]}, s16
    v_cndmask_b32 {A_W13L}, {T[8]}, {T[9]}, vcc
    v_mov_b32 {T[8]}, s19
    v_mov_b32 {T[9]}, s17
    v_cndmask_b32 {A_W13H}, {T[8]}, {T[9]}, vcc
    v_lshl_add_u32 {T[8]}, {KG}, 3, s95
    s_movk_i32 s31, 3584
    v_mul_lo_u32 {T[8]}, {T[8]}, s31
    v_lshl_add_u32 {T[8]}, {L7}, 4, {T[8]}
    s_lshl_b32 s31, s81, 7
    v_add_u32 {T[8]}, s31, {T[8]}
    v_add_co_u32 {A_W13L}, vcc, {A_W13L}, {T[8]}
    s_nop 1
    v_addc_co_u32 {A_W13H}, vcc, 0, {A_W13H}, vcc
    ; w2 voffset
    s_lshl_b32 s31, s30, 13
    v_lshlrev_b32 {A_W2}, 10, {L3}
    v_lshl_add_u32 {A_W2}, {L7}, 4, {A_W2}
    v_add_u32 {A_W2}, s31, {A_W2}
    s_lshl_b32 s82, s81, 16
    s_lshl_b32 s31, s69, 7
    s_add_u32 s82, s82, s31
    s_lshl_b32 s31, s30, 11
    v_lshlrev_b32 {A_OW}, 4, {L}
    v_add_u32 {A_OW}, s31, {A_OW}
    v_lshrrev_b32 {A_OR}, 8, {TID}
    v_lshlrev_b32 {A_OR}, 8, {A_OR}
    v_bfe_u32 {T[8]}, {TID}, 5, 2
    v_lshl_add_u32 {A_OR}, {T[8]}, 6, {A_OR}
    v_bfe_u32 {T[8]}, {TID}, 7, 1
    v_lshl_add_u32 {A_OR}, {T[8]}, 5, {A_OR}
    v_lshl_add_u32 {A_OR}, {L7}, 2, {A_OR}
    v_bfe_u32 {T[8]}, {TID}, 3, 2
    v_add_u32 {A_OR}, {A_OR}, {T[8]}
    v_lshlrev_b32 {A_OR}, 2, {A_OR}
    v_lshrrev_b32 {A_APST}, 1, {TID}
    v_lshlrev_b32 {A_APST}, 8, {A_APST}
    v_and_b32 {T[8]}, 1, {TID}
    v_lshl_add_u32 {A_APST}, {T[8]}, 2, {A_APST}
    s_and_b32 s31, s29, 1
    s_lshl_b32 s31, s31, 4
    v_lshl_add_u32 {T[8]}, {T[8]}, 3, s31
    v_lshrrev_b32 {A_APTAG}, {T[8]}, s64
    s_lshl_b32 s83, s28, 16
    s_lshl_b32 s31, s29, 3
    s_add_u32 s83, s83, s31
    s_add_u32 s83, s83, {AP_OFF}
    s_lshl_b32 s84, s28, 11
    s_lshl_b32 s31, s29, 4
    s_add_u32 s84, s84, s31
    s_add_u32 s84, s84, {ML_OFF}
    s_mov_b32 s93, {hex(f2u(SCALE))}
    s_mov_b32 s94, {hex(f2u(LOG2E))}
    """)
    lchk = a.lab("qchk"); lok = a.lab("qok"); lre = a.lab("qre"); lgo = a.lab("qgo")
    def qcheck():
        for i in range(4):
            a(f"v_cmpx_eq_u32_sdwa vcc, {QD[i]}, {VT1L} src0_sel:BYTE_0 src1_sel:BYTE_0")
        a(f"""
        v_cmpx_eq_u32 vcc, s64, v91
        s_cmp_eq_u64 exec, -1
        s_mov_b64 exec, -1
        s_cbranch_scc1 {lok}
        """)
    vm_save = None
    for i, (after, tag, vs) in enumerate(qsched):
        a.wait_vm("QP" + tag + "4")
        if vm_save is None: vm_save = list(a.vm)
        if i < len(qsched) - 1: qcheck()
    a.vm = vm_save
    a(f"{lchk}:")
    qcheck()
    budget()
    a(f"""
    s_sub_u32 s88, s88, 1
    s_cmp_lg_u32 s88, 0
    s_cbranch_scc1 {lre}
    """)
    qpublish("sc1", GCOPY, False)
    a(f"""
    s_mov_b32 s89, 1
    s_add_u32 s77, s77, {GCOPY}
    s_add_u32 s78, s78, {GCOPY}
    s_add_u32 s79, s79, {GCOPY}
    {lre}:
    """)
    qpoll(None)
    a(f"s_waitcnt vmcnt(0)\ns_branch {lchk}\n{lok}:")
    a.stamp("qok")
    a(f"""
    v_and_b32 {T[0]}, s66, {QD[0]}
    v_and_b32 {T[1]}, s66, {QD[1]}
    v_and_b32 {T[2]}, s66, {QD[2]}
    v_and_b32 {T[3]}, s66, {QD[3]}
    v_add_f32 {T[0]}, {T[0]}, {T[1]}
    v_add_f32 {T[2]}, {T[2]}, {T[3]}
    v_add_f32 {T[0]}, {T[0]}, {T[2]}
    v_cvt_pk_bf16_f32 {T[0]}, {T[0]}, {T[0]}
    ds_write_b16 {A_QW}, {T[0]} offset:{LDS_Q}
    v_cmp_ne_u32 vcc, s76, v90
    s_cmp_eq_u64 vcc, 0
    s_cselect_b32 s67, 1, 0
    s_cbranch_scc1 {lgo}
    s_cmp_eq_u32 s89, 1
    s_cbranch_scc1 {lgo}
    """)
    qpublish("sc1", GCOPY, False)
    a(f"""
    {lgo}:
    s_waitcnt lgkmcnt(0)
    s_barrier
    """)
    for s in range(4):
        a(f"ds_read_b128 {vr(QF+4*s)}, {A_QR} offset:{LDS_Q+64*s}")
    for s in range(4):
        a(f"s_waitcnt lgkmcnt({3-s})")
        a(f"v_mfma_f32_16x16x32_bf16 {vr(ACC)}, {vr(KR+4*s)}, {vr(QF+4*s)}, {'0' if s==0 else vr(ACC)}")
    a.vmem("WO0", f"buffer_load_dwordx4 {vr(WO)}, {A_WO}, s[44:47], s80 offen nt")
    a.vmem("WO1", f"buffer_load_dwordx4 {vr(WO+4)}, {A_WO}, s[44:47], s80 offen offset:1024 nt")
    a("s_nop 5")
    S = [T[0], T[1], T[2], T[3]]
    a(f"""
    v_cvt_pk_bf16_f32 {T[4]}, v{ACC}, v{ACC+1}
    v_cvt_pk_bf16_f32 {T[5]}, v{ACC+2}, v{ACC+3}
    v_lshlrev_b32 {S[0]}, 16, {T[4]}
    v_and_b32 {S[1]}, 0xffff0000, {T[4]}
    v_lshlrev_b32 {S[2]}, 16, {T[5]}
    v_and_b32 {S[3]}, 0xffff0000, {T[5]}
    v_mul_f32 {S[0]}, s93, {S[0]}
    v_mul_f32 {S[1]}, s93, {S[1]}
    v_mul_f32 {S[2]}, s93, {S[2]}
    v_mul_f32 {S[3]}, s93, {S[3]}
    v_cvt_pk_bf16_f32 {T[4]}, {S[0]}, {S[1]}
    v_cvt_pk_bf16_f32 {T[5]}, {S[2]}, {S[3]}
    v_lshlrev_b32 {S[0]}, 16, {T[4]}
    v_and_b32 {S[1]}, 0xffff0000, {T[4]}
    v_lshlrev_b32 {S[2]}, 16, {T[5]}
    v_and_b32 {S[3]}, 0xffff0000, {T[5]}
    v_max3_f32 {T[4]}, {S[0]}, {S[1]}, {S[2]}
    v_max_f32 {T[4]}, {T[4]}, {S[3]}
    """)
    swap_reduce(a, "v_max_f32", T[4], T[5], 16)
    swap_reduce(a, "v_max_f32", T[4], T[5], 32)
    a(f"""
    ds_write_b32 {A_MXW}, {T[4]} offset:{LDS_MX}
    v_mul_f32 {S[0]}, s94, {S[0]}
    v_mul_f32 {S[1]}, s94, {S[1]}
    v_mul_f32 {S[2]}, s94, {S[2]}
    v_mul_f32 {S[3]}, s94, {S[3]}
    s_waitcnt lgkmcnt(0)
    s_barrier
    """)
    for w2 in range(4):
        a(f"ds_read2_b32 v[{QF+2*w2}:{QF+2*w2+1}], {A_MXR} offset0:{32*w2} offset1:{32*w2+16}")
    a(f"""
    s_waitcnt lgkmcnt(0)
    v_max3_f32 {T[4]}, v{QF}, v{QF+1}, v{QF+2}
    v_max3_f32 {T[5]}, v{QF+3}, v{QF+4}, v{QF+5}
    v_max3_f32 {T[4]}, {T[4]}, v{QF+6}, v{QF+7}
    v_max_f32 {T[4]}, {T[4]}, {T[5]}
    v_mul_f32 {T[5]}, s94, {T[4]}
    v_sub_f32 {S[0]}, {S[0]}, {T[5]}
    v_sub_f32 {S[1]}, {S[1]}, {T[5]}
    v_sub_f32 {S[2]}, {S[2]}, {T[5]}
    v_sub_f32 {S[3]}, {S[3]}, {T[5]}
    v_exp_f32 {S[0]}, {S[0]}
    v_exp_f32 {S[1]}, {S[1]}
    v_exp_f32 {S[2]}, {S[2]}
    v_exp_f32 {S[3]}, {S[3]}
    v_add_f32 {T[5]}, {S[0]}, {S[1]}
    v_cvt_pk_bf16_f32 {S[0]}, {S[0]}, {S[0]}
    v_add_f32 {T[9]}, {S[2]}, {S[3]}
    v_cvt_pk_bf16_f32 {S[1]}, {S[1]}, {S[1]}
    v_add_f32 {T[5]}, {T[5]}, {T[9]}
    v_cvt_pk_bf16_f32 {S[2]}, {S[2]}, {S[2]}
    v_cvt_pk_bf16_f32 {S[3]}, {S[3]}, {S[3]}
    """)
    SHR = f"row_shr:4 {DPP} bound_ctrl:0"; SHL = f"row_shl:4 {DPP} bound_ctrl:0"
    def pv(r, fa, fb):
        p = S[r]
        a(f"v_and_b32 v{fa}, {p}, {M[0]}")
        a(f"v_and_b32 v{fa+1}, {p}, {M[1]}")
        a(f"v_and_b32_dpp v{fa+2}, {p}, {M[2]} {SHR}")
        a(f"v_and_b32_dpp v{fa+3}, {p}, {M[3]} {SHR}")
        a(f"v_and_b32_dpp v{fb}, {p}, {M[0]} {SHL}")
        a(f"v_and_b32_dpp v{fb+1}, {p}, {M[1]} {SHL}")
        a(f"v_and_b32 v{fb+2}, {p}, {M[2]}")
        a(f"v_and_b32 v{fb+3}, {p}, {M[3]}")
    def pvm(r, fa, fb, first):
        a(f"v_mfma_f32_16x16x32_bf16 {vr(ACC)}, {vr(VR+4*r)}, {vr(fa)}, {'0' if first else vr(ACC)}")
        a(f"v_mfma_f32_16x16x32_bf16 {vr(ACC+4)}, {vr(VR+4*r)}, {vr(fb)}, {'0' if first else vr(ACC+4)}")
    pv(0, BFa, BFb); pv(1, KR+8, KR+12)
    pvm(0, BFa, BFb, True)
    pv(2, QF, QF+4)
    pv(3, QF+8, QF+12)
    swap_reduce(a, "v_add_f32", T[5], T[9], 16)
    swap_reduce(a, "v_add_f32", T[5], T[9], 32)
    a(f"ds_write_b32 {A_MXW}, {T[5]} offset:{LDS_L}")
    a("s_waitcnt lgkmcnt(0)\ns_barrier")
    lml = a.lab("noml")
    a(f"""
    s_cmp_lg_u32 s30, 0
    s_cbranch_scc1 {lml}
    ds_read2_b32 v[{KR}:{KR+1}], {A_MXR} offset0:128 offset1:144
    ds_read2_b32 v[{KR+2}:{KR+3}], {A_MXR} offset0:160 offset1:176
    ds_read2_b32 v[{KR+4}:{KR+5}], {A_MXR} offset0:192 offset1:208
    ds_read2_b32 v[{KR+6}:{KR+7}], {A_MXR} offset0:224 offset1:240
    s_waitcnt lgkmcnt(0)
    v_add_f32 v{KR}, v{KR}, v{KR+1}
    v_add_f32 v{KR+2}, v{KR+2}, v{KR+3}
    v_add_f32 v{KR+4}, v{KR+4}, v{KR+5}
    v_add_f32 v{KR+6}, v{KR+6}, v{KR+7}
    v_add_f32 v{KR}, v{KR}, v{KR+2}
    v_add_f32 v{KR+4}, v{KR+4}, v{KR+6}
    v_add_f32 v{KR+1}, v{KR}, v{KR+4}
    v_mov_b32 v{KR+2}, s64
    v_mov_b32 v{KR+3}, s64
    v_bfi_b32 v{KR}, s65, v{KR+2}, {T[4]}
    v_lshrrev_b32 v{KR+4}, 8, v{KR+2}
    v_bfi_b32 v{KR+1}, s65, v{KR+4}, v{KR+1}
    s_mov_b64 exec, 0x1111
    {LOCAL}
    """)
    assert LDS_L - LDS_MX == 512
    store_sel(f"buffer_store_dwordx4 {vr(KR)}, {T[15]}, s[60:63], s84 offen")
    a(f"s_mov_b64 exec, -1\n{lml}:")
    def ffn_loads(which):
        lnf = a.lab("noffnld")
        a(f"s_cmp_ge_u32 s81, 28\ns_cbranch_scc1 {lnf}")
        if "w13" in which:
            a(f"global_load_dwordx4 {vr(W13)}, v[42:43], off nt")
            a(f"global_load_dwordx4 {vr(W13+4)}, v[42:43], off offset:3584 nt")
        if "w2" in which:
            a(f"buffer_load_dwordx4 {vr(W2)}, {A_W2}, s[56:59], s82 offen nt")
        a(f"{lnf}:")
    sched = opt.get("ffn_sched", {"appub": ["w13", "w2"]})
    if sched.get("prev3"): ffn_loads(sched["prev3"])
    a.stamp("prev3")
    if not sched.get("prev3"):
        a.wait_vm("V1")
        pvm(1, KR+8, KR+12, False)
        a.wait_vm("V2")
        pvm(2, QF, QF+4, False)
    if sched.get("prev3"):
        n_extra = (2 if "w13" in sched["prev3"] else 0) + (1 if "w2" in sched["prev3"] else 0)
        l1 = a.lab("v3a"); l2 = a.lab("v3b")
        a(f"s_cmp_ge_u32 s81, 28\ns_cbranch_scc1 {l1}\ns_waitcnt vmcnt({2+n_extra})\ns_branch {l2}\n{l1}:\ns_waitcnt vmcnt(2)\n{l2}:")
        a.vm = []
    else:
        a.wait_vm("V3")
    a.stamp("v3")
    if sched.get("prev3"):
        pvm(1, KR+8, KR+12, False)
        pvm(2, QF, QF+4, False)
    pvm(3, QF+8, QF+12, False)
    if sched.get("v3"): ffn_loads(sched["v3"])
    a(f"""
    s_nop 6
    ds_write_b128 {A_OW}, {vr(ACC)} offset:{LDS_RED}
    ds_write_b128 {A_OW}, {vr(ACC+4)} offset:{LDS_RED+1024}
    s_waitcnt lgkmcnt(0)
    s_barrier
    """)
    for k in range(4):
        a(f"ds_read2st64_b32 v[{QF+2*k}:{QF+2*k+1}], {A_OR} offset0:{16*k} offset1:{16*k+8}")
    a(f"""
    {LOCAL}
    s_waitcnt lgkmcnt(2)
    v_add_f32 v{QF}, v{QF}, v{QF+1}
    v_add_f32 v{QF+2}, v{QF+2}, v{QF+3}
    s_waitcnt lgkmcnt(0)
    v_add_f32 v{QF+4}, v{QF+4}, v{QF+5}
    v_add_f32 v{QF+6}, v{QF+6}, v{QF+7}
    v_add_f32 v{QF}, v{QF}, v{QF+2}
    v_add_f32 v{QF+4}, v{QF+4}, v{QF+6}
    v_add_f32 v{QF}, v{QF}, v{QF+4}
    v_bfi_b32 v{QF}, s65, {A_APTAG}, v{QF}
    """)
    store_sel(f"buffer_store_dword v{QF}, {A_APST}, s[60:63], s83 offen")
    a.stamp("appub")
    if sched.get("appub"): ffn_loads(sched["appub"])

    def mpoll(items, fold, mid=None):
        n = len(items)
        P = [f"s[{32+2*k}:{33+2*k}]" for k in range(n)]
        Pl = [(f"s{32+2*k}", f"s{33+2*k}") for k in range(n)]
        B = [f"s[{40+2*k}:{41+2*k}]" for k in range(n)]
        Bl = [(f"s{40+2*k}", f"s{41+2*k}") for k in range(n)]
        for k, (ld, _, (lo, hi)) in enumerate(items):
            a(f"s_mov_b32 {Pl[k][0]}, {lo}\ns_mov_b32 {Pl[k][1]}, {hi}")
            a(f"s_mov_b64 exec, {P[k]}")
            a(ld)
        a("s_mov_b64 exec, -1")
        if mid: mid()
        lc = a.lab("mc"); lo_ = a.lab("mo")
        a(f"{lc}:")
        a(f"s_mov_b64 exec, {P[0]}")
        a("s_waitcnt vmcnt(0)")
        for k, (_, chk, _) in enumerate(items):
            if k: a(f"s_mov_b64 exec, {P[k]}")
            for c in chk: a(c)
            a(f"s_andn2_b64 {B[k]}, {P[k]}, exec")
        if n > 1:
            a(f"s_or_b64 s[90:91], {B[0]}, {B[1]}")
            for k in range(2, n):
                a(f"s_or_b64 s[90:91], s[90:91], {B[k]}")
        a("s_mov_b64 exec, -1")
        a(f"s_cbranch_scc0 {lo_}")
        for k in range(n):
            if fold is None:
                a(f"s_mov_b64 {P[k]}, {B[k]}")
            else:
                a(f"s_or_b32 s90, {Bl[k][0]}, {Bl[k][1]}")
                a(f"s_lshr_b32 s91, s90, 16\ns_or_b32 s90, s90, s91")
                a(f"s_lshr_b32 s91, s90, 8\ns_or_b32 s90, s90, s91\ns_and_b32 s90, s90, 0xff\ns_mul_i32 {Pl[k][0]}, s90, 0x01010101")
                a(f"s_mov_b32 {Pl[k][1]}, {Pl[k][0]}")
            if n > 1:
                ls = a.lab("ms")
                a(f"s_mov_b64 exec, {P[k]}\ns_cbranch_execz {ls}\n{items[k][0]}\n{ls}:")
            else:
                a(f"s_mov_b64 exec, {P[k]}\n{items[k][0]}")
        budget()
        a(f"s_branch {lc}\n{lo_}:")
        a.vm = []
    def ppoll(ld, chk, init, mid=None, depth=2):
        a(f"s_mov_b32 s32, {init[0]}\ns_mov_b32 s33, {init[1]}\ns_mov_b64 exec, s[32:33]\n{ld}\ns_mov_b64 exec, -1")
        if mid: mid()
        lc = a.lab("pc"); lo_ = a.lab("po")
        a("s_mov_b64 exec, s[32:33]")
        for _ in range(depth - 2): a(ld)
        a(f"{lc}:")
        a(ld)
        a(f"s_waitcnt vmcnt({depth-1})")
        for c in chk: a(c)
        a(f"s_andn2_b64 s[32:33], s[32:33], exec")
        a(f"s_cbranch_scc0 {lo_}")
        a("s_mov_b64 exec, s[32:33]")
        budget()
        a(f"s_branch {lc}\n{lo_}:\ns_mov_b64 exec, -1")
        a.vm = []
    FULL = ("-1", "-1")
    def chk4(base): return [f"v_cmpx_eq_u32_sdwa vcc, v{base+k}, s64 src0_sel:BYTE_0 src1_sel:BYTE_{k}" for k in range(4)]
    def chkrec(base): return [f"v_cmpx_eq_u32_sdwa vcc, v{base}, s64 src0_sel:BYTE_0 src1_sel:BYTE_0",
                              f"v_cmpx_eq_u32_sdwa vcc, v{base+1}, s64 src0_sel:BYTE_0 src1_sel:BYTE_1",
                              f"v_cmpx_eq_u32 vcc, s64, v{base+2}"]
    def diag_pub(ldsbase, soff, skip_label):
        diag_write(ldsbase)
        a(f"s_cmp_lg_u32 s30, 0\ns_cbranch_scc1 {skip_label}")
        for k, off in enumerate((0, 256, 528, 528 + 256)):
            a(f"ds_read_b128 {vr(QF+4*k)}, {PUB_RD} offset:{ldsbase+off}")
        a(f"""
        s_waitcnt lgkmcnt(2)
        v_pk_add_f32 v[{QF}:{QF+1}], v[{QF}:{QF+1}], v[{QF+4}:{QF+5}]
        v_pk_add_f32 v[{QF+2}:{QF+3}], v[{QF+2}:{QF+3}], v[{QF+6}:{QF+7}]
        s_waitcnt lgkmcnt(0)
        v_pk_add_f32 v[{QF+8}:{QF+9}], v[{QF+8}:{QF+9}], v[{QF+12}:{QF+13}]
        v_pk_add_f32 v[{QF+10}:{QF+11}], v[{QF+10}:{QF+11}], v[{QF+14}:{QF+15}]
        v_pk_add_f32 v[{QF}:{QF+1}], v[{QF}:{QF+1}], v[{QF+8}:{QF+9}]
        v_pk_add_f32 v[{QF+2}:{QF+3}], v[{QF+2}:{QF+3}], v[{QF+10}:{QF+11}]
        s_nop 0
        """)
        dpp_reduce(a, "v_add_f32", [f"v{QF+k}" for k in range(4)], [X1, X2])
        for k in range(4):
            a(f"v_bfi_b32 v{QF+k}, s65, v{TG+k}, v{QF+k}")
        a(f"""
        s_mov_b32 exec_lo, 0x11111111
        s_mov_b32 exec_hi, 0x11111111
        buffer_store_dwordx4 {vr(QF)}, {PUB_ST}, s[60:63], {soff} offen sc1
        s_mov_b64 exec, -1
        s_nop 1
        """)
    def pc_reduce(src, out):
        base = QF + 8
        for k in range(4): a(f"v_and_b32 v{base+k}, s66, v{src+k}")
        a(f"""
        s_nop 0
        v_permlane32_swap_b32 v{base}, v{base+2}
        v_permlane32_swap_b32 v{base+1}, v{base+3}
        v_add_f32 v{base}, v{base}, v{base+2}
        v_add_f32 v{base+1}, v{base+1}, v{base+3}
        s_nop 1
        v_permlane16_swap_b32 v{base}, v{base+1}
        v_add_f32 {out}, v{base}, v{base+1}
        """)
        dpp_reduce(a, "v_add_f32", [out], [ROR(8), ROR(4), ROR(2)])

    TG = VR
    a(f"""
    v_mov_b32 v{TG}, s64
    v_lshrrev_b32 v{TG+1}, 8, v{TG}
    v_lshrrev_b32 v{TG+2}, 16, v{TG}
    v_lshrrev_b32 v{TG+3}, 24, v{TG}
    v_and_b32 {T[0]}, 31, {L}
    v_lshlrev_b32 {T[0]}, 4, {T[0]}
    s_lshl_b32 s77, s28, 11
    s_lshl_b32 s31, s68, 9
    s_add_u32 s77, s77, s31
    s_add_u32 s77, s77, {ML_OFF}
    v_lshlrev_b32 {T[1]}, 8, {L3}
    v_lshl_add_u32 {T[1]}, {L7}, 4, {T[1]}
    s_lshl_b32 s78, s28, 16
    s_lshl_b32 s31, s68, 14
    s_add_u32 s78, s78, s31
    s_lshl_b32 s31, s30, 11
    s_add_u32 s78, s78, s31
    s_add_u32 s78, s78, {AP_OFF}
    v_lshlrev_b32 {T[4]}, 3, {L7}
    s_lshl_b32 s79, s69, 13
    s_lshl_b32 s31, s28, 10
    s_add_u32 s79, s79, s31
    s_lshl_b32 s31, s68, 8
    s_add_u32 s79, s79, s31
    s_add_u32 s79, s79, {WP_OFF}
    """)
    mpoll([(f"buffer_load_dwordx4 {vr(KR)}, {T[0]}, s[60:63], s77 offen sc1", chkrec(KR), FULL)], None)
    a.stamp("mlok")
    WT = [f"v{KR+4+k}" for k in range(4)]
    def weights():
        a(f"v_and_b32 v{KR}, s66, v{KR}\nv_and_b32 v{KR+1}, s66, v{KR+1}\nv_mov_b32 {T[2]}, v{KR}")
        dpp_reduce(a, "v_max_f32", [T[2]], [X1, X2, HM, RM])
        swap_reduce(a, "v_max_f32", T[2], T[3], 16)
        a(f"""
        v_sub_f32 v{KR}, v{KR}, {T[2]}
        v_mul_f32 v{KR}, s94, v{KR}
        v_exp_f32 v{KR}, v{KR}
        s_nop 0
        v_mul_f32 {T[2]}, v{KR}, v{KR+1}
        """)
        dpp_reduce(a, "v_add_f32", [T[2]], [X1, X2, HM, RM])
        swap_reduce(a, "v_add_f32", T[2], T[3], 16)
        a(f"""
        v_rcp_f32 {T[2]}, {T[2]}
        s_nop 0
        v_mul_f32 v{KR}, v{KR}, {T[2]}
        ds_bpermute_b32 {WT[0]}, {T[4]}, v{KR}
        ds_bpermute_b32 {WT[1]}, {T[4]}, v{KR} offset:4
        ds_bpermute_b32 {WT[2]}, {T[4]}, v{KR} offset:64
        ds_bpermute_b32 {WT[3]}, {T[4]}, v{KR} offset:68
        s_waitcnt lgkmcnt(0)
        """)
    mpoll([(f"buffer_load_dwordx4 {vr(QF+4*k)}, {T[1]}, s[60:63], s78 offen offset:{128*k} sc1", chk4(QF+4*k), FULL) for k in range(2)],
          'p8', mid=weights)
    a.stamp("apok")
    if sched.get("apok"): ffn_loads(sched["apok"])
    for k in range(8):
        a(f"v_and_b32 v{QF+k}, s66, v{QF+k}")
    a(f"v_mul_f32 {T[2]}, {WT[0]}, v{QF}\nv_mul_f32 {T[3]}, {WT[0]}, v{QF+1}")
    for k in range(1, 4):
        a(f"v_fmac_f32 {T[2]}, {WT[k]}, v{QF+2*k}")
        a(f"v_fmac_f32 {T[3]}, {WT[k]}, v{QF+2*k+1}")
    a("s_nop 0")
    dpp_reduce(a, "v_add_f32", [T[2], T[3]], [X1, X2, HM])
    a(f"v_cvt_pk_bf16_f32 {T[2]}, {T[2]}, {T[2]}\nv_cvt_pk_bf16_f32 {T[3]}, {T[3]}, {T[3]}")
    bfrag(BFa, T[2]); bfrag(BFb, T[3])
    a(f"v_mfma_f32_16x16x32_bf16 {vr(ACC)}, {vr(WO)}, {vr(BFa)}, 0")
    a("s_nop 0")
    a(f"v_mfma_f32_16x16x32_bf16 {vr(ACC)}, {vr(WO+4)}, {vr(BFb)}, {vr(ACC)}")
    a("s_nop 5")
    lsk = a.lab("wpskip")
    diag_pub(LDS_RED2, "s79", lsk)
    a(f"{lsk}:")
    a.stamp("wppub")
    if sched.get("wppub"): ffn_loads(sched["wppub"])
    a(f"s_cmp_ge_u32 s81, 28\ns_cbranch_scc1 L_fin")
    WS4 = 1040
    QG = KR
    a(f"""
    s_lshl_b32 s77, s69, 13
    s_add_u32 s77, s77, {WP_OFF}
    """)
    def pre4():
        a(f"""
        s_mul_i32 s31, s30, {WS4}
        v_lshlrev_b32 {T[4]}, 4, {L}
        v_add_u32 {T[4]}, s31, {T[4]}
        v_bfe_u32 {T[5]}, {TID}, 1, 1
        v_lshlrev_b32 {T[5]}, 7, {T[5]}
        v_bfe_u32 {T[6]}, {TID}, 8, 1
        v_lshl_add_u32 {T[5]}, {T[6]}, 6, {T[5]}
        v_bfe_u32 {T[6]}, {TID}, 2, 1
        v_lshl_add_u32 {T[5]}, {T[6]}, 5, {T[5]}
        v_bfe_u32 {T[6]}, {TID}, 3, 3
        v_lshl_add_u32 {T[5]}, {T[6]}, 2, {T[5]}
        v_bfe_u32 {T[6]}, {TID}, 6, 2
        v_add_u32 {T[5]}, {T[5]}, {T[6]}
        v_lshlrev_b32 {T[5]}, 2, {T[5]}
        v_and_b32 {T[6]}, 1, {TID}
        s_movk_i32 s31, {4*WS4}
        v_mul_lo_u32 {T[6]}, {T[6]}, s31
        v_add_u32 {T[5]}, {T[5]}, {T[6]}
        v_lshlrev_b32 {T[6]}, 3, {L7}
        v_lshrrev_b32 {T[7]}, 3, {TID}
        v_lshlrev_b32 {T[7]}, 7, {T[7]}
        v_bfe_u32 {T[8]}, {TID}, 1, 2
        v_lshl_add_u32 {T[7]}, {T[8]}, 2, {T[7]}
        s_lshl_b32 s31, s30, 3
        v_mov_b32 {T[9]}, s31
        v_mov_b32 {T[12]}, 0x3f803f80
        v_mov_b32 {T[13]}, 0x3f803f80
        s_lshl_b32 s79, s81, 13
        s_lshl_b32 s31, s69, 4
        s_add_u32 s79, s79, s31
        s_add_u32 s79, s79, {FP_OFF}
        s_lshl_b32 s83, s81, 7
        s_add_u32 s83, s83, s31
        s_add_u32 s83, s83, {ST_OFF}
        """)
    PG = KR + 8
    if opt.get("pp", 2) >= 2:
        ppoll(f"buffer_load_dwordx4 {vr(PG)}, {G_PC}, s[60:63], s77 offen sc1", chk4(PG), FULL, mid=pre4, depth=opt.get("pp", 2))
    else:
        mpoll([(f"buffer_load_dwordx4 {vr(PG)}, {G_PC}, s[60:63], s77 offen sc1", chk4(PG), FULL)], None, mid=pre4)
    a.stamp("wpok")
    pc_reduce(PG, H)
    bf16r(a, H, H)
    a(f"""
    v_add_f32 {H}, {H}, {XR}
    v_cvt_pk_bf16_f32 {T[2]}, {H}, {H}
    v_and_b32 {H}, 0xffff0000, {T[2]}
    s_nop 0
    v_mov_b32_dpp {T[12]}, {T[2]} quad_perm:[0,0,0,0] row_mask:0xf bank_mask:0x3
    v_mov_b32_dpp {T[13]}, {T[2]} quad_perm:[1,1,1,1] row_mask:0xf bank_mask:0x3
    """)
    bfrag(BFa, T[12]); bfrag(BFb, T[13])
    a(f"v_mfma_f32_16x16x32_bf16 {vr(ACC)}, {vr(W13)}, {vr(BFa)}, 0")
    a(f"v_mul_f32 {T[3]}, {H}, {H}")
    a(f"v_mfma_f32_16x16x32_bf16 {vr(ACC)}, {vr(W13+4)}, {vr(BFb)}, {vr(ACC)}")
    a(f"""
    v_add_f32_dpp {T[2]}, {H}, {H} {X1}
    v_add_f32_dpp {T[3]}, {T[3]}, {T[3]} {X1}
    """)
    swap_reduce2(a, "v_add_f32", T[2], T[3], T[10], T[11], 16)
    a(f"ds_write_b128 {T[4]}, {vr(ACC)} offset:{LDS_RED}")
    swap_reduce2(a, "v_add_f32", T[2], T[3], T[10], T[11], 32)
    a(f"""
    s_mov_b64 exec, 1
    ds_write_b64 {T[9]}, v[22:23] offset:{LDS_STAT}
    s_mov_b64 exec, -1
    s_waitcnt lgkmcnt(0)
    s_barrier
    """)
    for k in range(4):
        a(f"ds_read_b32 v{QF+k}, {T[5]} offset:{LDS_RED + k*WS4}")
    a(f"ds_read_b64 v[{QF+4}:{QF+5}], {T[6]} offset:{LDS_STAT}")
    a(f"""
    {LOCAL}
    s_waitcnt lgkmcnt(1)
    v_add_f32 v{QF}, v{QF}, v{QF+1}
    v_add_f32 v{QF+2}, v{QF+2}, v{QF+3}
    v_add_f32 v{QF}, v{QF}, v{QF+2}
    s_nop 1
    v_add_f32_dpp v{QF}, v{QF}, v{QF} {X1}
    v_bfi_b32 v{QF}, s65, {PUB_TAG}, v{QF}
    s_mov_b32 exec_lo, 0x55555555
    s_mov_b32 exec_hi, 0x55555555
    """)
    store_sel(f"buffer_store_dword v{QF}, {T[7]}, s[60:63], s79 offen")
    a("s_mov_b64 exec, -1")
    lst = a.lab("nost")
    a(f"""
    s_cmp_lg_u32 s30, 7
    s_cbranch_scc1 {lst}
    s_waitcnt lgkmcnt(0)
    """)
    dpp_reduce(a, "v_add_f32", [f"v{QF+4}", f"v{QF+5}"], [X1, X2, HM])
    a(f"""
    v_mov_b32 v{QF+6}, s64
    v_mov_b32 v{QF+7}, s64
    v_bfi_b32 v{QF+4}, s65, v{QF+6}, v{QF+4}
    v_lshrrev_b32 {T[8]}, 8, v{QF+6}
    v_bfi_b32 v{QF+5}, s65, {T[8]}, v{QF+5}
    v_mov_b32 {T[8]}, 0
    s_mov_b64 exec, 1
    {LOCAL}
    """)
    store_sel(f"buffer_store_dwordx4 {vr(QF+4)}, {T[8]}, s[60:63], s83 offen")
    a(f"s_mov_b64 exec, -1\ns_nop 1\n{lst}:\ns_waitcnt lgkmcnt(0)")
    a.stamp("fppub")
    a(f"""
    v_lshlrev_b32 {T[2]}, 4, {L}
    s_lshl_b32 s77, s81, 13
    s_lshl_b32 s31, s30, 10
    s_add_u32 s77, s77, s31
    s_add_u32 s77, s77, {FP_OFF}
    v_lshlrev_b32 {T[3]}, 4, {L7}
    s_lshl_b32 s78, s81, 7
    s_add_u32 s78, s78, {ST_OFF}
    s_lshl_b32 s79, s69, 13
    s_lshl_b32 s31, s81, 8
    s_add_u32 s79, s79, s31
    s_add_u32 s79, s79, {OP_OFF}
    """)
    mpoll([(f"buffer_load_dwordx4 {vr(QG)}, {T[2]}, s[60:63], s77 offen sc1", chk4(QG), FULL),
           (f"buffer_load_dwordx4 {vr(QG+4)}, {T[3]}, s[60:63], s78 offen sc1", chkrec(QG+4), FULL)], None)
    a.stamp("fpok")
    R6 = [f"v{QG+k}" for k in range(6)]
    for r in [R6[4], R6[5], R6[0], R6[1], R6[2], R6[3]]: a(f"v_and_b32 {r}, s66, {r}")
    dpp_reduce(a, "v_add_f32", [R6[4], R6[5], R6[0], R6[1], R6[2], R6[3]], [X1, X2, HM])
    ln_finish(R6[4], R6[5])
    a(f"""
    v_fma_f32 {R6[0]}, -{R6[4]}, {R6[2]}, {R6[0]}
    v_fma_f32 {R6[1]}, -{R6[4]}, {R6[3]}, {R6[1]}
    v_mul_f32 {R6[0]}, {R6[0]}, {R6[5]}
    v_mul_f32 {R6[1]}, {R6[1]}, {R6[5]}
    v_cvt_pk_bf16_f32 {T[2]}, {R6[0]}, {R6[1]}
    v_lshlrev_b32 {R6[0]}, 16, {T[2]}
    v_mul_f32 {R6[2]}, {hex(f2u(-LOG2E))}, {R6[0]}
    v_exp_f32 {R6[2]}, {R6[2]}
    v_and_b32 {R6[1]}, 0xffff0000, {T[2]}
    v_add_f32 {R6[2]}, 1.0, {R6[2]}
    v_rcp_f32 {R6[2]}, {R6[2]}
    s_nop 0
    v_mul_f32 {T[2]}, {R6[0]}, {R6[2]}
    """)
    bf16r(a, T[2], T[2])
    a(f"""
    v_mul_f32 {T[2]}, {T[2]}, {R6[1]}
    v_cvt_pk_bf16_f32 {T[2]}, {T[2]}, {T[2]}
    """)
    bfrag(BFa, T[2])
    a("s_nop 1")
    a(f"v_mfma_f32_16x16x32_bf16 {vr(ACC)}, {vr(W2)}, {vr(BFa)}, 0")
    a("s_nop 5")
    lsk = a.lab("opskip")
    diag_pub(LDS_RED2, "s79", lsk)
    a(f"{lsk}:")
    a.stamp("oppub")
    a(f"""
    s_cmp_lg_u32 s29, s28
    s_cbranch_scc1 L_fin
    s_lshl_b32 s77, s69, 13
    s_add_u32 s77, s77, {OP_OFF}
    v_mov_b32 v{PG}, 0
    v_mov_b32 v{PG+1}, 0
    v_mov_b32 v{PG+2}, 0
    v_mov_b32 v{PG+3}, 0
    v_and_b32 {T[5]}, 1, {L}
    v_lshlrev_b32 {T[5]}, 1, {T[5]}
    v_lshl_add_u32 {T[5]}, {KG}, 4, {T[5]}
    s_lshl_b32 s79, s95, 1
    """)
    if opt.get("pp", 2) >= 2:
        ppoll(f"buffer_load_dwordx4 {vr(PG)}, {G_PC}, s[60:63], s77 offen sc1", chk4(PG), ("-1", "0x00ffffff"), depth=opt.get("pp", 2))
    else:
        mpoll([(f"buffer_load_dwordx4 {vr(PG)}, {G_PC}, s[60:63], s77 offen sc1", chk4(PG), ("-1", "0x00ffffff"))], None)
    a.stamp("opok")
    pc_reduce(PG, T[2])
    bf16r(a, T[2], T[2])
    a(f"""
    v_add_f32 {T[2]}, {T[2]}, {H}
    v_cvt_pk_bf16_f32 {T[2]}, {T[2]}, {T[2]}
    s_mov_b32 exec_lo, 0x00030003
    s_mov_b32 exec_hi, 0x00030003
    buffer_store_short {T[2]}, {T[5]}, s[52:55], s79 offen
    s_mov_b64 exec, -1
    s_cmp_lg_u32 s2, 0
    s_cbranch_scc1 L_fin
    s_cmp_lg_u32 s30, 0
    s_cbranch_scc1 L_fin
    v_mov_b32 {T[2]}, s64
    v_mov_b32 {T[3]}, 0
    s_mov_b64 exec, 1
    buffer_store_dword {T[2]}, {T[3]}, s[60:63], 0 offen sc1
    s_mov_b64 exec, -1
    L_fin:
    """)
    if stamps:
        a.stamp("end")
        a(f"""
        s_lshl_b32 s77, s2, 10
        s_lshl_b32 s31, s30, 7
        s_add_u32 s77, s77, s31
        s_add_u32 s77, s77, {TS_OFF}
        v_lshlrev_b32 {T[0]}, 2, {L}
        s_mov_b32 exec_lo, -1
        s_mov_b32 exec_hi, 0
        buffer_store_dword v135, {T[0]}, s[60:63], s77 offen
        """)
    a("L_end:\ns_endpgm")
    txt = wrap_single(a.text(), 256, 512, LDS_SIZE, NV)
    if stamps:
        txt = "; STAMPS " + ",".join(a.names) + "\n" + txt
    return txt

if __name__ == "__main__":
    open("k6.s", "w").write(gen(False))
    open("k6_ts.s", "w").write(gen(True))
    open("k6b_ts.s", "w").write(gen(True, {"pp": 1}))
```

```python
import sys, struct
from asmlib import *

E_OFF   = 0x0
QPL_OFF = 0x1000
QXL_OFF = 0x11000
GCOPY   = 0x180000
ML_OFF  = 0x12000
AP_OFF  = 0x20000
WP_OFF  = 0xA0000
FP_OFF  = 0xB0000
ST_OFF  = 0xF0000
OP_OFF  = 0x100000
TS_OFF  = 0x200000

LDS_RED  = 0
LDS_Q    = 20480
LDS_MX   = 21504
LDS_L    = 22016
LDS_STAT = 22528
LDS_X    = 23808
LDS_RED2 = 24832
LDS_SIZE = 36864

TAGC = 0x9E3779B9
SCALE = 0.08838834764831845
LOG2E = 1.4426950408889634
def f2u(x): return struct.unpack("<I", struct.pack("<f", x))[0]

class G(Asm):
    def __init__(self, stamps=False):
        super().__init__()
        self.vm = []
        self.stamps = stamps
        self.names = []
        self.uid = 0
    def vmem(self, name, ins):
        self(ins); self.vm.append(name)
    def wait_vm(self, name):
        idx = max(i for i, n in enumerate(self.vm) if n == name)
        n_after = len(self.vm) - 1 - idx
        self(f"s_waitcnt vmcnt({n_after})")
        self.vm = self.vm[idx+1:]
    def stamp(self, name):
        if self.stamps and (self.stamps is True or name in self.stamps):
            k = len(self.names); self.names.append(name)
            assert k < 32
            self(f"s_memrealtime s[98:99]\ns_waitcnt lgkmcnt(0)\nv_writelane_b32 v135, s98, {k}")
    def lab(self, base):
        self.uid += 1
        return f"L_{base}_{self.uid}"

DPP = "row_mask:0xf bank_mask:0xf"
X1 = f"quad_perm:[1,0,3,2] {DPP}"
X2 = f"quad_perm:[2,3,0,1] {DPP}"
HM = f"row_half_mirror {DPP}"
RM = f"row_mirror {DPP}"
def ROR(n): return f"row_ror:{n} {DPP}"

def dpp_reduce(a, op, regs, steps):
    for st in steps:
        if len(regs) == 1: a("s_nop 1")
        elif len(regs) == 2: a("s_nop 0")
        for r in regs:
            a(f"{op}_dpp {r}, {r}, {r} {st}")

def swap_reduce(a, op, r, t, which):
    a(f"v_mov_b32 {t}, {r}")
    a("s_nop 1")
    a(f"v_permlane{which}_swap_b32 {r}, {t}")
    a(f"{op} {r}, {r}, {t}")

def swap_reduce2(a, op, r0, r1, t0, t1, which):
    a(f"""
    v_mov_b32 {t0}, {r0}
    v_mov_b32 {t1}, {r1}
    s_nop 0
    v_permlane{which}_swap_b32 {r0}, {t0}
    v_permlane{which}_swap_b32 {r1}, {t1}
    {op} {r0}, {r0}, {t0}
    {op} {r1}, {r1}, {t1}
    """)

def bf16r(a, dst, src):
    a(f"v_cvt_pk_bf16_f32 {dst}, {src}, {src}")
    a(f"v_and_b32 {dst}, 0xffff0000, {dst}")

def gen(stamps=False, opt=None):
    opt = opt or {}
    SLEEP = opt.get("sleep", 0)
    a = G(stamps)
    TID="v0"; L="v1"; L7="v2"; L3="v3"; KG="v4"; N="v5"
    M=["v6","v7","v8","v9"]
    VT1="v10"
    VT1L="v11"
    PUB_RD="v12"; PUB_ST="v13"; PUB_TAG="v14"
    XR="v15"
    H="v16"
    A_RW="v17"; G_PC="v18"; VOFF="v19"
    T=[f"v{i}" for i in range(20, 36)]
    WQ=36; KR=44; VR=60; WO=76; W13=84; W2=92; QF=96; ACC=112
    BFa = 120; BFb = 124
    QKEEP = H
    NV = 136 if stamps else 128
    def vr(b, n=4): return f"v[{b}:{b+n-1}]"
    def srd(base, lo, size):
        a(f"s_mov_b32 s{base}, s{lo}\ns_mov_b32 s{base+1}, s{lo+1}\ns_mov_b32 s{base+2}, {size}\ns_mov_b32 s{base+3}, 0x20000")
    def budget():
        a(f"s_sub_u32 s97, s97, 1\ns_cbranch_scc1 L_end")
        if SLEEP: a(f"s_sleep {SLEEP}")
    def bfrag(base, dup):
        for j in range(4):
            a(f"v_and_b32 v{base+j}, {dup}, {M[j]}")
    def store_sel(ins):
        l1 = a.lab("stl"); l2 = a.lab("std")
        a(f"s_cbranch_scc1 {l1}\n{ins} sc1\ns_branch {l2}\n{l1}:\n{ins}\n{l2}:")
    LOCAL = "s_cmp_eq_u32 s67, 1"

    a(f"""
    s_cmp_ge_u32 s2, 256
    s_cbranch_scc1 L_end
    s_load_dwordx16 s[4:19], s[0:1], 0
    s_load_dwordx8 s[20:27], s[0:1], 64
    s_and_b32 s28, s2, 7                     ; g
    s_lshr_b32 s29, s2, 3                    ; j
    v_and_b32 {L}, 63, {TID}
    v_lshrrev_b32 {T[0]}, 6, {TID}
    v_and_b32 {L7}, 7, {L}
    v_readfirstlane_b32 s30, {T[0]}          ; w
    v_lshrrev_b32 {L3}, 3, {L}
    v_lshrrev_b32 {KG}, 4, {L}
    v_and_b32 {N}, 15, {L}
    s_lshr_b32 s68, s29, 3
    s_and_b32 s69, s29, 7                    ; cb = j&7
    s_lshl_b32 s70, s68, 20
    s_lshl_b32 s31, s28, 10
    s_add_u32 s70, s70, s31
    s_lshl_b32 s31, s69, 7
    s_add_u32 s70, s70, s31
    s_add_u32 s71, s70, 8192
    s_lshl_b32 s31, s30, 4                   ; 16w
    v_lshl_add_u32 {T[0]}, {L3}, 1, s31
    v_lshlrev_b32 {T[1]}, 13, {T[0]}
    v_lshl_add_u32 {T[1]}, {L7}, 4, {T[1]}
    v_lshlrev_b32 {T[3]}, 4, {L}             ; T3 = lane*16
    """)
    if stamps: a("v_mov_b32 v135, 0")
    if opt.get("codepf", True):
        lc = a.lab("nocpf")
        a(f"""
        s_cmp_lg_u32 s30, 7
        s_cbranch_scc1 {lc}
        s_getpc_b64 s[84:85]
        L_pcbase:
        s_lshl_b32 s31, s29, 9
        v_lshlrev_b32 {T[8]}, 7, {L}
        v_add_u32 {T[8]}, s31, {T[8]}
        v_cmp_gt_u32 vcc, L_end-L_pcbase, {T[8]}
        s_and_b64 exec, vcc, 0xf
        s_cbranch_execz L_cpf_skip
        global_load_dword v88, {T[8]}, s[84:85]
        L_cpf_skip:
        s_mov_b64 exec, -1
        {lc}:
        """)
    a("s_waitcnt lgkmcnt(0)")
    a.stamp("start")
    srd(40, 10, 0x400000)
    srd(48, 4, 1024)
    srd(60, 26, 0x20000000)
    lx = a.lab("nox")
    a(f"""
    s_cmp_lg_u32 s30, 0
    s_cbranch_scc1 {lx}
    v_mov_b32 {T[11]}, 0
    buffer_load_dword {XR}, {T[11]}, s[60:63], 0 offen sc1
    buffer_load_dwordx4 v[32:35], {T[3]}, s[48:51], 0 offen
    {lx}:
    """)
    a.vmem("WQ0", f"buffer_load_dwordx4 {vr(WQ)}, {T[1]}, s[40:43], s70 offen nt")
    a.vmem("WQ1", f"buffer_load_dwordx4 {vr(WQ+4)}, {T[1]}, s[40:43], s71 offen nt")
    srd(32, 6, 0x8000000)
    a(f"""
    s_lshl_b32 s72, s28, 24
    s_lshl_b32 s31, s29, 15
    s_add_u32 s72, s72, s31
    s_add_u32 s72, s72, {61440*256}          ; s72 = K/V soffset
    s_lshl_b32 s31, s30, 12
    v_lshlrev_b32 {T[6]}, 8, {N}
    v_lshl_add_u32 {T[6]}, {KG}, 4, {T[6]}
    v_add_u32 {T[6]}, s31, {T[6]}            ; T6 = K voffset
    v_lshlrev_b32 {T[7]}, 10, {KG}
    v_lshl_add_u32 {T[7]}, {N}, 4, {T[7]}
    v_add_u32 {VOFF}, s31, {T[7]}            ; V voffset
    s_barrier
    """)
    a.vmem("K0", f"buffer_load_dwordx4 {vr(KR)}, {T[6]}, s[32:35], s72 offen nt")
    a.vmem("K1", f"buffer_load_dwordx4 {vr(KR+4)}, {T[6]}, s[32:35], s72 offen offset:64 nt")
    K23 = [f"buffer_load_dwordx4 {vr(KR+8)}, {T[6]}, s[32:35], s72 offen offset:128 nt",
           f"buffer_load_dwordx4 {vr(KR+12)}, {T[6]}, s[32:35], s72 offen offset:192 nt"]
    srd(36, 8, 0x8000000)
    srd(44, 12, 0x400000)
    srd(52, 22, 1024)
    srd(56, 20, 1792*512*2)
    a(f"""
    s_mov_b32 s65, 0xff
    s_mov_b32 s66, 0xffffff00
    s_mov_b32 s97, 0x200000
    v_and_b32 {T[8]}, 1, {L}
    v_cmp_eq_u32 vcc, 1, {T[8]}
    v_mov_b32 {T[9]}, 0xffff
    v_mov_b32 {T[10]}, 0xffff0000
    v_cndmask_b32 {T[9]}, {T[9]}, {T[10]}, vcc
    v_bfe_u32 {T[8]}, {L}, 1, 2
    """)
    for j in range(4):
        a(f"v_cmp_eq_u32 vcc, {j}, {T[8]}")
        a("s_nop 1")
        a(f"v_cndmask_b32 {M[j]}, 0, {T[9]}, vcc")
    a(f"""
    s_mul_i32 s31, s30, 528
    v_lshlrev_b32 {A_RW}, 7, {KG}
    v_lshl_add_u32 {A_RW}, {L7}, 4, {A_RW}
    v_add_u32 {A_RW}, s31, {A_RW}
    s_lshr_b32 s31, s30, 2
    s_lshl_b32 s31, s31, 5
    s_and_b32 s75, s30, 3
    s_add_u32 s31, s31, s75
    s_lshl_b32 s31, s31, 2
    s_movk_i32 s75, 528
    v_mul_lo_u32 {T[5]}, {L7}, s75
    v_lshl_add_u32 {T[5]}, {L3}, 4, {T[5]}
    v_add_u32 {T[5]}, s31, {T[5]}
    s_getreg_b32 s76, hwreg(HW_REG_XCC_ID)
    s_and_b32 s76, s76, 15
    s_lshl_b32 s31, s68, 8
    v_lshl_add_u32 {T[2]}, {T[0]}, 1, s31
    s_lshr_b32 s95, s30, 2
    s_lshl_b32 s95, s95, 5
    s_and_b32 s75, s30, 3
    s_lshl_b32 s75, s75, 1
    s_add_u32 s95, s95, s75
    s_lshl_b32 s75, s69, 6
    s_add_u32 s95, s95, s75
    s_lshl_b32 s31, s95, 1
    v_and_b32 {T[4]}, 1, {L}
    v_lshlrev_b32 {T[4]}, 1, {T[4]}
    v_lshl_add_u32 {T[4]}, {KG}, 4, {T[4]}
    v_add_u32 {T[4]}, s31, {T[4]}
    v_lshrrev_b32 {PUB_ST}, 2, {L}
    v_lshlrev_b32 {PUB_ST}, 4, {PUB_ST}
    v_and_b32 {T[8]}, 3, {L}
    s_movk_i32 s31, {2*528}
    v_mul_lo_u32 {T[8]}, {T[8]}, s31
    v_add_u32 {PUB_RD}, {PUB_ST}, {T[8]}
    v_lshrrev_b32 {T[8]}, 1, {L}
    v_lshlrev_b32 {G_PC}, 8, {T[8]}
    v_and_b32 {T[8]}, 1, {L}
    v_lshl_add_u32 {G_PC}, {T[8]}, 4, {G_PC}
    s_lshl_b32 s31, s30, 5
    v_add_u32 {G_PC}, s31, {G_PC}
    s_lshl_b32 s86, s28, 13
    s_lshl_b32 s31, s68, 11
    s_add_u32 s86, s86, s31
    s_lshl_b32 s31, s69, 8
    s_add_u32 s86, s86, s31
    s_lshl_b32 s31, s30, 5
    s_add_u32 s86, s86, s31
    s_add_u32 s86, s86, {QPL_OFF}
    s_lshl_b32 s31, s28, 8
    s_lshl_b32 s87, s29, 3
    s_add_u32 s87, s87, s31
    s_add_u32 s87, s87, {QXL_OFF}
    s_lshl_b32 s81, s68, 3
    s_add_u32 s81, s81, s28
    """)
    lln = a.lab("noln"); lln2 = a.lab("lndone")
    a(f"s_cmp_eq_u32 s30, 0\ns_cbranch_scc1 {lln}")
    for k in K23: a(k)
    a(f"s_branch {lln2}\n{lln}:\ns_waitcnt vmcnt(4)")
    U = [f"v{QF+i}" for i in range(8)]
    for i in range(4):
        a(f"v_lshlrev_b32 {U[2*i]}, 16, v{32+i}")
        a(f"v_and_b32 {U[2*i+1]}, 0xffff0000, v{32+i}")
    a(f"""
    v_add_f32 {T[8]}, {U[0]}, {U[1]}
    v_mul_f32 {T[9]}, {U[0]}, {U[0]}
    v_add_f32 {T[10]}, {U[2]}, {U[3]}
    v_mul_f32 {T[11]}, {U[1]}, {U[1]}
    v_add_f32 {T[8]}, {T[8]}, {U[4]}
    v_fmac_f32 {T[9]}, {U[2]}, {U[2]}
    v_add_f32 {T[10]}, {T[10]}, {U[5]}
    v_fmac_f32 {T[11]}, {U[3]}, {U[3]}
    v_add_f32 {T[8]}, {T[8]}, {U[6]}
    v_fmac_f32 {T[9]}, {U[4]}, {U[4]}
    v_add_f32 {T[10]}, {T[10]}, {U[7]}
    v_fmac_f32 {T[11]}, {U[5]}, {U[5]}
    v_fmac_f32 {T[9]}, {U[6]}, {U[6]}
    v_fmac_f32 {T[11]}, {U[7]}, {U[7]}
    v_add_f32 {T[8]}, {T[8]}, {T[10]}
    v_add_f32 {T[9]}, {T[9]}, {T[11]}
    ds_write_b128 {T[3]}, v[32:35] offset:{LDS_X}
    """)
    dpp_reduce(a, "v_add_f32", [T[8], T[9]], [X1, X2, HM, RM])
    swap_reduce2(a, "v_add_f32", T[8], T[9], T[10], T[11], 16)
    swap_reduce2(a, "v_add_f32", T[8], T[9], T[10], T[11], 32)
    def ln_finish(mean, var):
        a(f"""
        v_mul_f32 {mean}, {hex(f2u(1.0/512))}, {mean}
        v_mul_f32 {var}, {hex(f2u(1.0/512))}, {var}
        v_fma_f32 {var}, -{mean}, {mean}, {var}
        v_max_f32 {var}, 0, {var}
        v_cvt_pk_bf16_f32 {var}, {var}, {mean}
        v_and_b32 {mean}, 0xffff0000, {var}
        v_lshlrev_b32 {var}, 16, {var}
        v_add_f32 {var}, {hex(f2u(1e-5))}, {var}
        """)
        bf16r(a, var, var)
        a(f"v_sqrt_f32 {var}, {var}")
        a("s_nop 0")
        bf16r(a, var, var)
        a(f"v_rcp_f32 {var}, {var}")
    ln_finish(T[8], T[9])
    a(f"""
    v_mov_b32 {T[10]}, {XR}
    v_mov_b32 {T[11]}, 0
    ds_write_b96 {T[11]}, v[28:30] offset:{LDS_STAT}
    """)
    for k in K23: a(k)
    a(f"{lln2}:")
    a.vm += ["K2", "K3"]
    a(f"""
    v_lshlrev_b32 {T[13]}, 2, {L3}
    v_mov_b32 {T[11]}, 0
    s_waitcnt lgkmcnt(0)
    s_barrier
    ds_read_b96 v[28:30], {T[11]} offset:{LDS_STAT}
    ds_read_b32 {T[3]}, {T[2]} offset:{LDS_X}
    ds_read_u16 {XR}, {T[4]} offset:{LDS_X}
    s_waitcnt lgkmcnt(1)
    v_lshlrev_b32 {T[2]}, 16, {T[3]}
    v_and_b32 {T[3]}, 0xffff0000, {T[3]}
    v_sub_f32 {T[2]}, {T[2]}, {T[8]}
    v_sub_f32 {T[3]}, {T[3]}, {T[8]}
    v_cvt_pk_bf16_f32 {T[3]}, {T[2]}, {T[3]}
    v_lshlrev_b32 {T[2]}, 16, {T[3]}
    v_and_b32 {T[3]}, 0xffff0000, {T[3]}
    v_mul_f32 {T[2]}, {T[2]}, {T[9]}
    v_mul_f32 {T[3]}, {T[3]}, {T[9]}
    v_cvt_pk_bf16_f32 {T[2]}, {T[2]}, {T[2]}
    v_cvt_pk_bf16_f32 {T[3]}, {T[3]}, {T[3]}
    """)
    a.stamp("ln")
    bfrag(BFa, T[2]); bfrag(BFb, T[3])
    a.wait_vm("WQ1")
    a.stamp("wq")
    a(f"v_mfma_f32_16x16x32_bf16 {vr(ACC)}, {vr(WQ)}, {vr(BFa)}, 0")
    a(f"v_mfma_f32_16x16x32_bf16 {vr(ACC)}, {vr(WQ+4)}, {vr(BFb)}, {vr(ACC)}")
    a(f"""
    v_readfirstlane_b32 s64, {T[10]}
    s_add_u32 s64, s64, {TAGC}
    v_and_b32 {T[8]}, 3, {L3}
    v_lshlrev_b32 {T[8]}, 3, {T[8]}
    v_lshrrev_b32 {VT1}, {T[8]}, s64
    s_nop 2
    """)
    def diag_write(ldsbase):
        a("s_mov_b32 exec_lo, 0x00ff00ff\ns_mov_b32 exec_hi, 0xff00ff00")
        a(f"ds_write_b128 {A_RW}, {vr(ACC)} offset:{ldsbase}")
        a("s_mov_b64 exec, -1")
        a("s_waitcnt lgkmcnt(0)\ns_barrier")
    diag_write(LDS_RED)
    a(f"""
    ds_read_b32 {T[14]}, {T[5]} offset:{LDS_RED}
    ds_read_b32 {T[15]}, {T[5]} offset:{LDS_RED+256}
    s_waitcnt lgkmcnt(0)
    v_add_f32 {QKEEP}, {T[14]}, {T[15]}
    """)
    dpp_reduce(a, "v_add_f32", [QKEEP], [X1, X2, HM])
    a(f"v_bfi_b32 {QKEEP}, s65, {VT1}, {QKEEP}")
    def qpublish(flags, add, main):
        a(f"""
        s_add_u32 s92, s86, {add}
        s_mov_b32 exec_lo, 0x01010101
        s_mov_b32 exec_hi, 0x01010101
        """)
        ins = f"buffer_store_dword {QKEEP}, {T[13]}, s[60:63], s92 offen {flags}"
        if main: a.vmem("STQ", ins)
        else: a(ins)
        lq = a.lab("noqx")
        a(f"""
        s_mov_b64 exec, -1
        s_cmp_lg_u32 s30, 0
        s_cbranch_scc1 {lq}
        v_mov_b32 v{ACC}, s76
        v_mov_b32 v{ACC+1}, s64
        v_mov_b32 v{ACC+2}, 0
        s_add_u32 s92, s87, {add}
        s_mov_b64 exec, 1
        buffer_store_dwordx2 v[{ACC}:{ACC+1}], v{ACC+2}, s[60:63], s92 offen {flags}
        s_mov_b64 exec, -1
        {lq}:
        """)
    qpublish("", 0, True)
    a.stamp("qpub")
    a("s_barrier")
    VL = [f"buffer_load_dwordx4 {vr(VR+4*r)}, {VOFF}, s[36:39], s72 offen offset:{256*r} nt" for r in range(4)]
    a.vmem("V0", VL[0])
    a(f"""
    v_lshlrev_b32 {XR}, 16, {XR}
    v_and_b32 {T[8]}, 3, {L}
    v_lshlrev_b32 {T[8]}, 3, {T[8]}
    v_lshrrev_b32 {VT1L}, {T[8]}, s64
    v_bfe_u32 {T[8]}, {L}, 1, 2
    v_lshlrev_b32 {T[8]}, 3, {T[8]}
    v_lshrrev_b32 {PUB_TAG}, {T[8]}, s64
    v_lshlrev_b32 {T[4]}, 2, {TID}            ; col t*4
    s_lshl_b32 s77, s28, 13
    s_add_u32 s77, s77, {QPL_OFF}
    s_add_u32 s78, s77, 4096
    v_and_b32 {T[5]}, 31, {L}
    v_lshlrev_b32 {T[5]}, 3, {T[5]}
    s_lshl_b32 s79, s28, 8
    s_add_u32 s79, s79, {QXL_OFF}
    s_mov_b32 s88, {opt.get("local_tries", 64)}
    s_mov_b32 s89, 0
    """)
    QD = ["v92", "v93", "v94", "v95"]
    def qpoll(tag):
        ins = [
          f"buffer_load_dword {QD[0]}, {T[4]}, s[60:63], s77 offen sc1",
          f"buffer_load_dword {QD[1]}, {T[4]}, s[60:63], s77 offen offset:2048 sc1",
          f"buffer_load_dword {QD[2]}, {T[4]}, s[60:63], s78 offen sc1",
          f"buffer_load_dword {QD[3]}, {T[4]}, s[60:63], s78 offen offset:2048 sc1",
          f"buffer_load_dwordx2 v[90:91], {T[5]}, s[60:63], s79 offen sc1",
        ]
        for i, s_ in enumerate(ins):
            if tag: a.vmem(f"{tag}{i}", s_)
            else: a(s_)
    qsched = opt.get("qsched", [("K2", "A", [1]), ("K3", "B", [2, 3])])
    for (after, tag, vs) in qsched:
        a.wait_vm(after)
        qpoll("QP" + tag)
        a("s_barrier")
        for r in vs: a.vmem(f"V{r}", VL[r])
    a.stamp("k3")
    A_WO="v36"; A_QW="v37"; A_QR="v38"; A_N4="v39"; A_MXW="v40"; A_W13L="v42"; A_W13H="v43"; A_MXR="v41"
    A_W2=VOFF
    A_OW=T[10]; A_OR=T[11]; A_APST=T[12]; A_APTAG=T[14]
    a(f"""
    s_lshl_b32 s31, s30, 14
    v_lshlrev_b32 {A_WO}, 11, {L3}
    v_lshl_add_u32 {A_WO}, {L7}, 4, {A_WO}
    v_add_u32 {A_WO}, s31, {A_WO}
    s_lshl_b32 s80, s28, 19
    s_lshl_b32 s31, s68, 17
    s_add_u32 s80, s80, s31
    s_lshl_b32 s31, s69, 7
    s_add_u32 s80, s80, s31
    v_lshlrev_b32 {A_QW}, 1, {TID}
    v_lshrrev_b32 {A_QR}, 3, {N}
    v_bfe_u32 {T[8]}, {N}, 2, 1
    v_lshl_add_u32 {A_QR}, {T[8]}, 1, {A_QR}  ; head(n)
    v_lshlrev_b32 {T[15]}, 9, {A_QR}
    v_lshlrev_b32 {A_QR}, 8, {A_QR}
    v_lshl_add_u32 {A_QR}, {KG}, 4, {A_QR}
    s_lshl_b32 s31, s30, 6
    v_lshlrev_b32 {A_N4}, 2, {N}
    v_add_u32 {A_MXW}, s31, {A_N4}
    v_add_u32 {A_MXR}, {LDS_MX}, {A_N4}
    ; w13 per-lane address: base(l&8 ? w3 : w1) + (64cb + 8w + kg)*3584 + fbk*128 + l7*16   (second load +4 rows)
    v_and_b32 {T[8]}, 8, {L}
    v_cmp_eq_u32 vcc, 0, {T[8]}
    v_mov_b32 {T[8]}, s18
    v_mov_b32 {T[9]}, s16
    v_cndmask_b32 {A_W13L}, {T[8]}, {T[9]}, vcc
    v_mov_b32 {T[8]}, s19
    v_mov_b32 {T[9]}, s17
    v_cndmask_b32 {A_W13H}, {T[8]}, {T[9]}, vcc
    v_lshl_add_u32 {T[8]}, {KG}, 3, s95
    s_movk_i32 s31, 3584
    v_mul_lo_u32 {T[8]}, {T[8]}, s31
    v_lshl_add_u32 {T[8]}, {L7}, 4, {T[8]}
    s_lshl_b32 s31, s81, 7
    v_add_u32 {T[8]}, s31, {T[8]}
    v_add_co_u32 {A_W13L}, vcc, {A_W13L}, {T[8]}
    s_nop 1
    v_addc_co_u32 {A_W13H}, vcc, 0, {A_W13H}, vcc
    ; w2 voffset
    s_lshl_b32 s31, s30, 13
    v_lshlrev_b32 {A_W2}, 10, {L3}
    v_lshl_add_u32 {A_W2}, {L7}, 4, {A_W2}
    v_add_u32 {A_W2}, s31, {A_W2}
    s_lshl_b32 s82, s81, 16
    s_lshl_b32 s31, s69, 7
    s_add_u32 s82, s82, s31
    s_lshl_b32 s31, s30, 11
    v_lshlrev_b32 {A_OW}, 4, {L}
    v_add_u32 {A_OW}, s31, {A_OW}
    v_lshrrev_b32 {A_OR}, 8, {TID}
    v_lshlrev_b32 {A_OR}, 8, {A_OR}
    v_bfe_u32 {T[8]}, {TID}, 5, 2
    v_lshl_add_u32 {A_OR}, {T[8]}, 6, {A_OR}
    v_bfe_u32 {T[8]}, {TID}, 7, 1
    v_lshl_add_u32 {A_OR}, {T[8]}, 5, {A_OR}
    v_lshl_add_u32 {A_OR}, {L7}, 2, {A_OR}
    v_bfe_u32 {T[8]}, {TID}, 3, 2
    v_add_u32 {A_OR}, {A_OR}, {T[8]}
    v_lshlrev_b32 {A_OR}, 2, {A_OR}
    v_lshrrev_b32 {A_APST}, 1, {TID}
    v_lshlrev_b32 {A_APST}, 8, {A_APST}
    v_and_b32 {T[8]}, 1, {TID}
    v_lshl_add_u32 {A_APST}, {T[8]}, 2, {A_APST}
    s_and_b32 s31, s29, 1
    s_lshl_b32 s31, s31, 4
    v_lshl_add_u32 {T[8]}, {T[8]}, 3, s31
    v_lshrrev_b32 {A_APTAG}, {T[8]}, s64
    s_lshl_b32 s83, s28, 16
    s_lshl_b32 s31, s29, 3
    s_add_u32 s83, s83, s31
    s_add_u32 s83, s83, {AP_OFF}
    s_lshl_b32 s84, s28, 11
    s_lshl_b32 s31, s29, 4
    s_add_u32 s84, s84, s31
    s_add_u32 s84, s84, {ML_OFF}
    s_mov_b32 s93, {hex(f2u(SCALE))}
    s_mov_b32 s94, {hex(f2u(LOG2E))}
    """)
    lchk = a.lab("qchk"); lok = a.lab("qok"); lre = a.lab("qre"); lgo = a.lab("qgo")
    def qcheck():
        for i in range(4):
            a(f"v_cmpx_eq_u32_sdwa vcc, {QD[i]}, {VT1L} src0_sel:BYTE_0 src1_sel:BYTE_0")
        a(f"""
        v_cmpx_eq_u32 vcc, s64, v91
        s_cmp_eq_u64 exec, -1
        s_mov_b64 exec, -1
        s_cbranch_scc1 {lok}
        """)
    vm_save = None
    for i, (after, tag, vs) in enumerate(qsched):
        a.wait_vm("QP" + tag + "4")
        if vm_save is None: vm_save = list(a.vm)
        if i < len(qsched) - 1: qcheck()
    a.vm = vm_save
    a(f"{lchk}:")
    qcheck()
    budget()
    a(f"""
    s_sub_u32 s88, s88, 1
    s_cmp_lg_u32 s88, 0
    s_cbranch_scc1 {lre}
    """)
    qpublish("sc1", GCOPY, False)
    a(f"""
    s_mov_b32 s89, 1
    s_add_u32 s77, s77, {GCOPY}
    s_add_u32 s78, s78, {GCOPY}
    s_add_u32 s79, s79, {GCOPY}
    {lre}:
    """)
    qpoll(None)
    a(f"s_waitcnt vmcnt(0)\ns_branch {lchk}\n{lok}:")
    a.stamp("qok")
    a(f"""
    v_and_b32 {T[0]}, s66, {QD[0]}
    v_and_b32 {T[1]}, s66, {QD[1]}
    v_and_b32 {T[2]}, s66, {QD[2]}
    v_and_b32 {T[3]}, s66, {QD[3]}
    v_add_f32 {T[0]}, {T[0]}, {T[1]}
    v_add_f32 {T[2]}, {T[2]}, {T[3]}
    v_add_f32 {T[0]}, {T[0]}, {T[2]}
    v_cvt_pk_bf16_f32 {T[0]}, {T[0]}, {T[0]}
    ds_write_b16 {A_QW}, {T[0]} offset:{LDS_Q}
    v_cmp_ne_u32 vcc, s76, v90
    s_cmp_eq_u64 vcc, 0
    s_cselect_b32 s67, 1, 0
    s_cbranch_scc1 {lgo}
    s_cmp_eq_u32 s89, 1
    s_cbranch_scc1 {lgo}
    """)
    qpublish("sc1", GCOPY, False)
    a(f"""
    {lgo}:
    s_waitcnt lgkmcnt(0)
    s_barrier
    """)
    for s in range(4):
        a(f"ds_read_b128 {vr(QF+4*s)}, {A_QR} offset:{LDS_Q+64*s}")
    for s in range(4):
        a(f"s_waitcnt lgkmcnt({3-s})")
        a(f"v_mfma_f32_16x16x32_bf16 {vr(ACC)}, {vr(KR+4*s)}, {vr(QF+4*s)}, {'0' if s==0 else vr(ACC)}")
    a.vmem("WO0", f"buffer_load_dwordx4 {vr(WO)}, {A_WO}, s[44:47], s80 offen nt")
    a.vmem("WO1", f"buffer_load_dwordx4 {vr(WO+4)}, {A_WO}, s[44:47], s80 offen offset:1024 nt")
    a("s_nop 5")
    S = [T[0], T[1], T[2], T[3]]
    a(f"""
    v_cvt_pk_bf16_f32 {T[4]}, v{ACC}, v{ACC+1}
    v_cvt_pk_bf16_f32 {T[5]}, v{ACC+2}, v{ACC+3}
    v_lshlrev_b32 {S[0]}, 16, {T[4]}
    v_and_b32 {S[1]}, 0xffff0000, {T[4]}
    v_lshlrev_b32 {S[2]}, 16, {T[5]}
    v_and_b32 {S[3]}, 0xffff0000, {T[5]}
    v_mul_f32 {S[0]}, s93, {S[0]}
    v_mul_f32 {S[1]}, s93, {S[1]}
    v_mul_f32 {S[2]}, s93, {S[2]}
    v_mul_f32 {S[3]}, s93, {S[3]}
    v_cvt_pk_bf16_f32 {T[4]}, {S[0]}, {S[1]}
    v_cvt_pk_bf16_f32 {T[5]}, {S[2]}, {S[3]}
    v_lshlrev_b32 {S[0]}, 16, {T[4]}
    v_and_b32 {S[1]}, 0xffff0000, {T[4]}
    v_lshlrev_b32 {S[2]}, 16, {T[5]}
    v_and_b32 {S[3]}, 0xffff0000, {T[5]}
    v_max3_f32 {T[4]}, {S[0]}, {S[1]}, {S[2]}
    v_max_f32 {T[4]}, {T[4]}, {S[3]}
    """)
    swap_reduce(a, "v_max_f32", T[4], T[5], 16)
    swap_reduce(a, "v_max_f32", T[4], T[5], 32)
    a(f"""
    ds_write_b32 {A_MXW}, {T[4]} offset:{LDS_MX}
    v_mul_f32 {S[0]}, s94, {S[0]}
    v_mul_f32 {S[1]}, s94, {S[1]}
    v_mul_f32 {S[2]}, s94, {S[2]}
    v_mul_f32 {S[3]}, s94, {S[3]}
    s_waitcnt lgkmcnt(0)
    s_barrier
    """)
    for w2 in range(4):
        a(f"ds_read2_b32 v[{QF+2*w2}:{QF+2*w2+1}], {A_MXR} offset0:{32*w2} offset1:{32*w2+16}")
    a(f"""
    s_waitcnt lgkmcnt(0)
    v_max3_f32 {T[4]}, v{QF}, v{QF+1}, v{QF+2}
    v_max3_f32 {T[5]}, v{QF+3}, v{QF+4}, v{QF+5}
    v_max3_f32 {T[4]}, {T[4]}, v{QF+6}, v{QF+7}
    v_max_f32 {T[4]}, {T[4]}, {T[5]}
    v_mul_f32 {T[5]}, s94, {T[4]}
    v_sub_f32 {S[0]}, {S[0]}, {T[5]}
    v_sub_f32 {S[1]}, {S[1]}, {T[5]}
    v_sub_f32 {S[2]}, {S[2]}, {T[5]}
    v_sub_f32 {S[3]}, {S[3]}, {T[5]}
    v_exp_f32 {S[0]}, {S[0]}
    v_exp_f32 {S[1]}, {S[1]}
    v_exp_f32 {S[2]}, {S[2]}
    v_exp_f32 {S[3]}, {S[3]}
    v_add_f32 {T[5]}, {S[0]}, {S[1]}
    v_cvt_pk_bf16_f32 {S[0]}, {S[0]}, {S[0]}
    v_add_f32 {T[9]}, {S[2]}, {S[3]}
    v_cvt_pk_bf16_f32 {S[1]}, {S[1]}, {S[1]}
    v_add_f32 {T[5]}, {T[5]}, {T[9]}
    v_cvt_pk_bf16_f32 {S[2]}, {S[2]}, {S[2]}
    v_cvt_pk_bf16_f32 {S[3]}, {S[3]}, {S[3]}
    """)
    SHR = f"row_shr:4 {DPP} bound_ctrl:0"; SHL = f"row_shl:4 {DPP} bound_ctrl:0"
    def pv(r, fa, fb):
        p = S[r]
        a(f"v_and_b32 v{fa}, {p}, {M[0]}")
        a(f"v_and_b32 v{fa+1}, {p}, {M[1]}")
        a(f"v_and_b32_dpp v{fa+2}, {p}, {M[2]} {SHR}")
        a(f"v_and_b32_dpp v{fa+3}, {p}, {M[3]} {SHR}")
        a(f"v_and_b32_dpp v{fb}, {p}, {M[0]} {SHL}")
        a(f"v_and_b32_dpp v{fb+1}, {p}, {M[1]} {SHL}")
        a(f"v_and_b32 v{fb+2}, {p}, {M[2]}")
        a(f"v_and_b32 v{fb+3}, {p}, {M[3]}")
    def pvm(r, fa, fb, first):
        a(f"v_mfma_f32_16x16x32_bf16 {vr(ACC)}, {vr(VR+4*r)}, {vr(fa)}, {'0' if first else vr(ACC)}")
        a(f"v_mfma_f32_16x16x32_bf16 {vr(ACC+4)}, {vr(VR+4*r)}, {vr(fb)}, {'0' if first else vr(ACC+4)}")
    pv(0, BFa, BFb); pv(1, KR+8, KR+12)
    pvm(0, BFa, BFb, True)
    pv(2, QF, QF+4)
    pv(3, QF+8, QF+12)
    swap_reduce(a, "v_add_f32", T[5], T[9], 16)
    swap_reduce(a, "v_add_f32", T[5], T[9], 32)
    a(f"ds_write_b32 {A_MXW}, {T[5]} offset:{LDS_L}")
    a("s_waitcnt lgkmcnt(0)\ns_barrier")
    lml = a.lab("noml")
    a(f"""
    s_cmp_lg_u32 s30, 0
    s_cbranch_scc1 {lml}
    ds_read2_b32 v[{KR}:{KR+1}], {A_MXR} offset0:128 offset1:144
    ds_read2_b32 v[{KR+2}:{KR+3}], {A_MXR} offset0:160 offset1:176
    ds_read2_b32 v[{KR+4}:{KR+5}], {A_MXR} offset0:192 offset1:208
    ds_read2_b32 v[{KR+6}:{KR+7}], {A_MXR} offset0:224 offset1:240
    s_waitcnt lgkmcnt(0)
    v_add_f32 v{KR}, v{KR}, v{KR+1}
    v_add_f32 v{KR+2}, v{KR+2}, v{KR+3}
    v_add_f32 v{KR+4}, v{KR+4}, v{KR+5}
    v_add_f32 v{KR+6}, v{KR+6}, v{KR+7}
    v_add_f32 v{KR}, v{KR}, v{KR+2}
    v_add_f32 v{KR+4}, v{KR+4}, v{KR+6}
    v_add_f32 v{KR+1}, v{KR}, v{KR+4}
    v_mov_b32 v{KR+2}, s64
    v_mov_b32 v{KR+3}, s64
    v_bfi_b32 v{KR}, s65, v{KR+2}, {T[4]}
    v_lshrrev_b32 v{KR+4}, 8, v{KR+2}
    v_bfi_b32 v{KR+1}, s65, v{KR+4}, v{KR+1}
    s_mov_b64 exec, 0x1111
    {LOCAL}
    """)
    assert LDS_L - LDS_MX == 512
    store_sel(f"buffer_store_dwordx4 {vr(KR)}, {T[15]}, s[60:63], s84 offen")
    a(f"s_mov_b64 exec, -1\n{lml}:")
    def ffn_loads(which):
        lnf = a.lab("noffnld")
        a(f"s_cmp_ge_u32 s81, 28\ns_cbranch_scc1 {lnf}")
        if "w13" in which:
            a(f"global_load_dwordx4 {vr(W13)}, v[42:43], off nt")
            a(f"global_load_dwordx4 {vr(W13+4)}, v[42:43], off offset:3584 nt")
        if "w2" in which:
            a(f"buffer_load_dwordx4 {vr(W2)}, {A_W2}, s[56:59], s82 offen nt")
        a(f"{lnf}:")
    sched = opt.get("ffn_sched", {"appub": ["w13", "w2"]})
    if sched.get("prev3"): ffn_loads(sched["prev3"])
    a.stamp("prev3")
    if not sched.get("prev3"):
        a.wait_vm("V1")
        pvm(1, KR+8, KR+12, False)
        a.wait_vm("V2")
        pvm(2, QF, QF+4, False)
    if sched.get("prev3"):
        n_extra = (2 if "w13" in sched["prev3"] else 0) + (1 if "w2" in sched["prev3"] else 0)
        l1 = a.lab("v3a"); l2 = a.lab("v3b")
        a(f"s_cmp_ge_u32 s81, 28\ns_cbranch_scc1 {l1}\ns_waitcnt vmcnt({2+n_extra})\ns_branch {l2}\n{l1}:\ns_waitcnt vmcnt(2)\n{l2}:")
        a.vm = []
    else:
        a.wait_vm("V3")
    a.stamp("v3")
    if sched.get("prev3"):
        pvm(1, KR+8, KR+12, False)
        pvm(2, QF, QF+4, False)
    pvm(3, QF+8, QF+12, False)
    if sched.get("v3"): ffn_loads(sched["v3"])
    a(f"""
    s_nop 6
    ds_write_b128 {A_OW}, {vr(ACC)} offset:{LDS_RED}
    ds_write_b128 {A_OW}, {vr(ACC+4)} offset:{LDS_RED+1024}
    s_waitcnt lgkmcnt(0)
    s_barrier
    """)
    for k in range(4):
        a(f"ds_read2st64_b32 v[{QF+2*k}:{QF+2*k+1}], {A_OR} offset0:{16*k} offset1:{16*k+8}")
    a(f"""
    {LOCAL}
    s_waitcnt lgkmcnt(2)
    v_add_f32 v{QF}, v{QF}, v{QF+1}
    v_add_f32 v{QF+2}, v{QF+2}, v{QF+3}
    s_waitcnt lgkmcnt(0)
    v_add_f32 v{QF+4}, v{QF+4}, v{QF+5}
    v_add_f32 v{QF+6}, v{QF+6}, v{QF+7}
    v_add_f32 v{QF}, v{QF}, v{QF+2}
    v_add_f32 v{QF+4}, v{QF+4}, v{QF+6}
    v_add_f32 v{QF}, v{QF}, v{QF+4}
    v_bfi_b32 v{QF}, s65, {A_APTAG}, v{QF}
    """)
    store_sel(f"buffer_store_dword v{QF}, {A_APST}, s[60:63], s83 offen")
    a.stamp("appub")
    if sched.get("appub"): ffn_loads(sched["appub"])

    def mpoll(items, fold, mid=None):
        n = len(items)
        P = [f"s[{32+2*k}:{33+2*k}]" for k in range(n)]
        Pl = [(f"s{32+2*k}", f"s{33+2*k}") for k in range(n)]
        B = [f"s[{40+2*k}:{41+2*k}]" for k in range(n)]
        Bl = [(f"s{40+2*k}", f"s{41+2*k}") for k in range(n)]
        for k, (ld, _, (lo, hi)) in enumerate(items):
            a(f"s_mov_b32 {Pl[k][0]}, {lo}\ns_mov_b32 {Pl[k][1]}, {hi}")
            a(f"s_mov_b64 exec, {P[k]}")
            a(ld)
        a("s_mov_b64 exec, -1")
        if mid: mid()
        lc = a.lab("mc"); lo_ = a.lab("mo")
        a(f"{lc}:")
        a(f"s_mov_b64 exec, {P[0]}")
        a("s_waitcnt vmcnt(0)")
        for k, (_, chk, _) in enumerate(items):
            if k: a(f"s_mov_b64 exec, {P[k]}")
            for c in chk: a(c)
            a(f"s_andn2_b64 {B[k]}, {P[k]}, exec")
        if n > 1:
            a(f"s_or_b64 s[90:91], {B[0]}, {B[1]}")
            for k in range(2, n):
                a(f"s_or_b64 s[90:91], s[90:91], {B[k]}")
        a("s_mov_b64 exec, -1")
        a(f"s_cbranch_scc0 {lo_}")
        for k in range(n):
            if fold is None:
                a(f"s_mov_b64 {P[k]}, {B[k]}")
            else:
                a(f"s_or_b32 s90, {Bl[k][0]}, {Bl[k][1]}")
                a(f"s_lshr_b32 s91, s90, 16\ns_or_b32 s90, s90, s91")
                a(f"s_lshr_b32 s91, s90, 8\ns_or_b32 s90, s90, s91\ns_and_b32 s90, s90, 0xff\ns_mul_i32 {Pl[k][0]}, s90, 0x01010101")
                a(f"s_mov_b32 {Pl[k][1]}, {Pl[k][0]}")
            if n > 1:
                ls = a.lab("ms")
                a(f"s_mov_b64 exec, {P[k]}\ns_cbranch_execz {ls}\n{items[k][0]}\n{ls}:")
            else:
                a(f"s_mov_b64 exec, {P[k]}\n{items[k][0]}")
        budget()
        a(f"s_branch {lc}\n{lo_}:")
        a.vm = []
    def ppoll(ld, chk, init, mid=None, depth=2):
        a(f"s_mov_b32 s32, {init[0]}\ns_mov_b32 s33, {init[1]}\ns_mov_b64 exec, s[32:33]\n{ld}\ns_mov_b64 exec, -1")
        if mid: mid()
        lc = a.lab("pc"); lo_ = a.lab("po")
        a("s_mov_b64 exec, s[32:33]")
        for _ in range(depth - 2): a(ld)
        a(f"{lc}:")
        a(ld)
        a(f"s_waitcnt vmcnt({depth-1})")
        for c in chk: a(c)
        a(f"s_andn2_b64 s[32:33], s[32:33], exec")
        a(f"s_cbranch_scc0 {lo_}")
        a("s_mov_b64 exec, s[32:33]")
        budget()
        a(f"s_branch {lc}\n{lo_}:\ns_mov_b64 exec, -1")
        a.vm = []
    FULL = ("-1", "-1")
    def chk4(base): return [f"v_cmpx_eq_u32_sdwa vcc, v{base+k}, s64 src0_sel:BYTE_0 src1_sel:BYTE_{k}" for k in range(4)]
    def chkrec(base): return [f"v_cmpx_eq_u32_sdwa vcc, v{base}, s64 src0_sel:BYTE_0 src1_sel:BYTE_0",
                              f"v_cmpx_eq_u32_sdwa vcc, v{base+1}, s64 src0_sel:BYTE_0 src1_sel:BYTE_1",
                              f"v_cmpx_eq_u32 vcc, s64, v{base+2}"]
    def diag_pub(ldsbase, soff, skip_label):
        diag_write(ldsbase)
        a(f"s_cmp_lg_u32 s30, 0\ns_cbranch_scc1 {skip_label}")
        for k, off in enumerate((0, 256, 528, 528 + 256)):
            a(f"ds_read_b128 {vr(QF+4*k)}, {PUB_RD} offset:{ldsbase+off}")
        a(f"""
        s_waitcnt lgkmcnt(2)
        v_pk_add_f32 v[{QF}:{QF+1}], v[{QF}:{QF+1}], v[{QF+4}:{QF+5}]
        v_pk_add_f32 v[{QF+2}:{QF+3}], v[{QF+2}:{QF+3}], v[{QF+6}:{QF+7}]
        s_waitcnt lgkmcnt(0)
        v_pk_add_f32 v[{QF+8}:{QF+9}], v[{QF+8}:{QF+9}], v[{QF+12}:{QF+13}]
        v_pk_add_f32 v[{QF+10}:{QF+11}], v[{QF+10}:{QF+11}], v[{QF+14}:{QF+15}]
        v_pk_add_f32 v[{QF}:{QF+1}], v[{QF}:{QF+1}], v[{QF+8}:{QF+9}]
        v_pk_add_f32 v[{QF+2}:{QF+3}], v[{QF+2}:{QF+3}], v[{QF+10}:{QF+11}]
        s_nop 0
        """)
        dpp_reduce(a, "v_add_f32", [f"v{QF+k}" for k in range(4)], [X1, X2])
        for k in range(4):
            a(f"v_bfi_b32 v{QF+k}, s65, v{TG+k}, v{QF+k}")
        a(f"""
        s_mov_b32 exec_lo, 0x11111111
        s_mov_b32 exec_hi, 0x11111111
        buffer_store_dwordx4 {vr(QF)}, {PUB_ST}, s[60:63], {soff} offen sc1
        s_mov_b64 exec, -1
        s_nop 1
        """)
    def pc_reduce(src, out):
        base = QF + 8
        for k in range(4): a(f"v_and_b32 v{base+k}, s66, v{src+k}")
        a(f"""
        s_nop 0
        v_permlane32_swap_b32 v{base}, v{base+2}
        v_permlane32_swap_b32 v{base+1}, v{base+3}
        v_add_f32 v{base}, v{base}, v{base+2}
        v_add_f32 v{base+1}, v{base+1}, v{base+3}
        s_nop 1
        v_permlane16_swap_b32 v{base}, v{base+1}
        v_add_f32 {out}, v{base}, v{base+1}
        """)
        dpp_reduce(a, "v_add_f32", [out], [ROR(8), ROR(4), ROR(2)])

    TG = VR
    a(f"""
    v_mov_b32 v{TG}, s64
    v_lshrrev_b32 v{TG+1}, 8, v{TG}
    v_lshrrev_b32 v{TG+2}, 16, v{TG}
    v_lshrrev_b32 v{TG+3}, 24, v{TG}
    v_and_b32 {T[0]}, 31, {L}
    v_lshlrev_b32 {T[0]}, 4, {T[0]}
    s_lshl_b32 s77, s28, 11
    s_lshl_b32 s31, s68, 9
    s_add_u32 s77, s77, s31
    s_add_u32 s77, s77, {ML_OFF}
    v_lshlrev_b32 {T[1]}, 8, {L3}
    v_lshl_add_u32 {T[1]}, {L7}, 4, {T[1]}
    s_lshl_b32 s78, s28, 16
    s_lshl_b32 s31, s68, 14
    s_add_u32 s78, s78, s31
    s_lshl_b32 s31, s30, 11
    s_add_u32 s78, s78, s31
    s_add_u32 s78, s78, {AP_OFF}
    v_lshlrev_b32 {T[4]}, 3, {L7}
    s_lshl_b32 s79, s69, 13
    s_lshl_b32 s31, s28, 10
    s_add_u32 s79, s79, s31
    s_lshl_b32 s31, s68, 8
    s_add_u32 s79, s79, s31
    s_add_u32 s79, s79, {WP_OFF}
    """)
    mpoll([(f"buffer_load_dwordx4 {vr(KR)}, {T[0]}, s[60:63], s77 offen sc1", chkrec(KR), FULL)], None)
    a.stamp("mlok")
    WT = [f"v{KR+4+k}" for k in range(4)]
    def weights():
        a(f"v_and_b32 v{KR}, s66, v{KR}\nv_and_b32 v{KR+1}, s66, v{KR+1}\nv_mov_b32 {T[2]}, v{KR}")
        dpp_reduce(a, "v_max_f32", [T[2]], [X1, X2, HM, RM])
        swap_reduce(a, "v_max_f32", T[2], T[3], 16)
        a(f"""
        v_sub_f32 v{KR}, v{KR}, {T[2]}
        v_mul_f32 v{KR}, s94, v{KR}
        v_exp_f32 v{KR}, v{KR}
        s_nop 0
        v_mul_f32 {T[2]}, v{KR}, v{KR+1}
        """)
        dpp_reduce(a, "v_add_f32", [T[2]], [X1, X2, HM, RM])
        swap_reduce(a, "v_add_f32", T[2], T[3], 16)
        a(f"""
        v_rcp_f32 {T[2]}, {T[2]}
        s_nop 0
        v_mul_f32 v{KR}, v{KR}, {T[2]}
        ds_bpermute_b32 {WT[0]}, {T[4]}, v{KR}
        ds_bpermute_b32 {WT[1]}, {T[4]}, v{KR} offset:4
        ds_bpermute_b32 {WT[2]}, {T[4]}, v{KR} offset:64
        ds_bpermute_b32 {WT[3]}, {T[4]}, v{KR} offset:68
        s_waitcnt lgkmcnt(0)
        """)
    mpoll([(f"buffer_load_dwordx4 {vr(QF+4*k)}, {T[1]}, s[60:63], s78 offen offset:{128*k} sc1", chk4(QF+4*k), FULL) for k in range(2)],
          'p8', mid=weights)
    a.stamp("apok")
    if sched.get("apok"): ffn_loads(sched["apok"])
    for k in range(8):
        a(f"v_and_b32 v{QF+k}, s66, v{QF+k}")
    a(f"v_mul_f32 {T[2]}, {WT[0]}, v{QF}\nv_mul_f32 {T[3]}, {WT[0]}, v{QF+1}")
    for k in range(1, 4):
        a(f"v_fmac_f32 {T[2]}, {WT[k]}, v{QF+2*k}")
        a(f"v_fmac_f32 {T[3]}, {WT[k]}, v{QF+2*k+1}")
    a("s_nop 0")
    dpp_reduce(a, "v_add_f32", [T[2], T[3]], [X1, X2, HM])
    a(f"v_cvt_pk_bf16_f32 {T[2]}, {T[2]}, {T[2]}\nv_cvt_pk_bf16_f32 {T[3]}, {T[3]}, {T[3]}")
    bfrag(BFa, T[2]); bfrag(BFb, T[3])
    a(f"v_mfma_f32_16x16x32_bf16 {vr(ACC)}, {vr(WO)}, {vr(BFa)}, 0")
    a("s_nop 0")
    a(f"v_mfma_f32_16x16x32_bf16 {vr(ACC)}, {vr(WO+4)}, {vr(BFb)}, {vr(ACC)}")
    a("s_nop 5")
    lsk = a.lab("wpskip")
    diag_pub(LDS_RED2, "s79", lsk)
    a(f"{lsk}:")
    a.stamp("wppub")
    if sched.get("wppub"): ffn_loads(sched["wppub"])
    a(f"s_cmp_ge_u32 s81, 28\ns_cbranch_scc1 L_fin")
    WS4 = 1040
    QG = KR
    a(f"""
    s_lshl_b32 s77, s69, 13
    s_add_u32 s77, s77, {WP_OFF}
    """)
    def pre4():
        a(f"""
        s_mul_i32 s31, s30, {WS4}
        v_lshlrev_b32 {T[4]}, 4, {L}
        v_add_u32 {T[4]}, s31, {T[4]}
        v_bfe_u32 {T[5]}, {TID}, 1, 1
        v_lshlrev_b32 {T[5]}, 7, {T[5]}
        v_bfe_u32 {T[6]}, {TID}, 8, 1
        v_lshl_add_u32 {T[5]}, {T[6]}, 6, {T[5]}
        v_bfe_u32 {T[6]}, {TID}, 2, 1
        v_lshl_add_u32 {T[5]}, {T[6]}, 5, {T[5]}
        v_bfe_u32 {T[6]}, {TID}, 3, 3
        v_lshl_add_u32 {T[5]}, {T[6]}, 2, {T[5]}
        v_bfe_u32 {T[6]}, {TID}, 6, 2
        v_add_u32 {T[5]}, {T[5]}, {T[6]}
        v_lshlrev_b32 {T[5]}, 2, {T[5]}
        v_and_b32 {T[6]}, 1, {TID}
        s_movk_i32 s31, {4*WS4}
        v_mul_lo_u32 {T[6]}, {T[6]}, s31
        v_add_u32 {T[5]}, {T[5]}, {T[6]}
        v_lshlrev_b32 {T[6]}, 3, {L7}
        v_lshrrev_b32 {T[7]}, 3, {TID}
        v_lshlrev_b32 {T[7]}, 7, {T[7]}
        v_bfe_u32 {T[8]}, {TID}, 1, 2
        v_lshl_add_u32 {T[7]}, {T[8]}, 2, {T[7]}
        s_lshl_b32 s31, s30, 3
        v_mov_b32 {T[9]}, s31
        v_mov_b32 {T[12]}, 0x3f803f80
        v_mov_b32 {T[13]}, 0x3f803f80
        s_lshl_b32 s79, s81, 13
        s_lshl_b32 s31, s69, 4
        s_add_u32 s79, s79, s31
        s_add_u32 s79, s79, {FP_OFF}
        s_lshl_b32 s83, s81, 7
        s_add_u32 s83, s83, s31
        s_add_u32 s83, s83, {ST_OFF}
        """)
    PG = KR + 8
    if opt.get("pp", 2) >= 2:
        ppoll(f"buffer_load_dwordx4 {vr(PG)}, {G_PC}, s[60:63], s77 offen sc1", chk4(PG), FULL, mid=pre4, depth=opt.get("pp", 2))
    else:
        mpoll([(f"buffer_load_dwordx4 {vr(PG)}, {G_PC}, s[60:63], s77 offen sc1", chk4(PG), FULL)], None, mid=pre4)
    a.stamp("wpok")
    pc_reduce(PG, H)
    bf16r(a, H, H)
    a(f"""
    v_add_f32 {H}, {H}, {XR}
    v_cvt_pk_bf16_f32 {T[2]}, {H}, {H}
    v_and_b32 {H}, 0xffff0000, {T[2]}
    s_nop 0
    v_mov_b32_dpp {T[12]}, {T[2]} quad_perm:[0,0,0,0] row_mask:0xf bank_mask:0x3
    v_mov_b32_dpp {T[13]}, {T[2]} quad_perm:[1,1,1,1] row_mask:0xf bank_mask:0x3
    """)
    bfrag(BFa, T[12]); bfrag(BFb, T[13])
    a(f"v_mfma_f32_16x16x32_bf16 {vr(ACC)}, {vr(W13)}, {vr(BFa)}, 0")
    a(f"v_mul_f32 {T[3]}, {H}, {H}")
    a(f"v_mfma_f32_16x16x32_bf16 {vr(ACC)}, {vr(W13+4)}, {vr(BFb)}, {vr(ACC)}")
    a(f"""
    v_add_f32_dpp {T[2]}, {H}, {H} {X1}
    v_add_f32_dpp {T[3]}, {T[3]}, {T[3]} {X1}
    """)
    swap_reduce2(a, "v_add_f32", T[2], T[3], T[10], T[11], 16)
    a(f"ds_write_b128 {T[4]}, {vr(ACC)} offset:{LDS_RED}")
    swap_reduce2(a, "v_add_f32", T[2], T[3], T[10], T[11], 32)
    a(f"""
    s_mov_b64 exec, 1
    ds_write_b64 {T[9]}, v[22:23] offset:{LDS_STAT}
    s_mov_b64 exec, -1
    s_waitcnt lgkmcnt(0)
    s_barrier
    """)
    for k in range(4):
        a(f"ds_read_b32 v{QF+k}, {T[5]} offset:{LDS_RED + k*WS4}")
    a(f"ds_read_b64 v[{QF+4}:{QF+5}], {T[6]} offset:{LDS_STAT}")
    a(f"""
    {LOCAL}
    s_waitcnt lgkmcnt(1)
    v_add_f32 v{QF}, v{QF}, v{QF+1}
    v_add_f32 v{QF+2}, v{QF+2}, v{QF+3}
    v_add_f32 v{QF}, v{QF}, v{QF+2}
    s_nop 1
    v_add_f32_dpp v{QF}, v{QF}, v{QF} {X1}
    v_bfi_b32 v{QF}, s65, {PUB_TAG}, v{QF}
    s_mov_b32 exec_lo, 0x55555555
    s_mov_b32 exec_hi, 0x55555555
    """)
    store_sel(f"buffer_store_dword v{QF}, {T[7]}, s[60:63], s79 offen")
    a("s_mov_b64 exec, -1")
    lst = a.lab("nost")
    a(f"""
    s_cmp_lg_u32 s30, 7
    s_cbranch_scc1 {lst}
    s_waitcnt lgkmcnt(0)
    """)
    dpp_reduce(a, "v_add_f32", [f"v{QF+4}", f"v{QF+5}"], [X1, X2, HM])
    a(f"""
    v_mov_b32 v{QF+6}, s64
    v_mov_b32 v{QF+7}, s64
    v_bfi_b32 v{QF+4}, s65, v{QF+6}, v{QF+4}
    v_lshrrev_b32 {T[8]}, 8, v{QF+6}
    v_bfi_b32 v{QF+5}, s65, {T[8]}, v{QF+5}
    v_mov_b32 {T[8]}, 0
    s_mov_b64 exec, 1
    {LOCAL}
    """)
    store_sel(f"buffer_store_dwordx4 {vr(QF+4)}, {T[8]}, s[60:63], s83 offen")
    a(f"s_mov_b64 exec, -1\ns_nop 1\n{lst}:\ns_waitcnt lgkmcnt(0)")
    a.stamp("fppub")
    a(f"""
    v_lshlrev_b32 {T[2]}, 4, {L}
    s_lshl_b32 s77, s81, 13
    s_lshl_b32 s31, s30, 10
    s_add_u32 s77, s77, s31
    s_add_u32 s77, s77, {FP_OFF}
    v_lshlrev_b32 {T[3]}, 4, {L7}
    s_lshl_b32 s78, s81, 7
    s_add_u32 s78, s78, {ST_OFF}
    s_lshl_b32 s79, s69, 13
    s_lshl_b32 s31, s81, 8
    s_add_u32 s79, s79, s31
    s_add_u32 s79, s79, {OP_OFF}
    """)
    mpoll([(f"buffer_load_dwordx4 {vr(QG)}, {T[2]}, s[60:63], s77 offen sc1", chk4(QG), FULL),
           (f"buffer_load_dwordx4 {vr(QG+4)}, {T[3]}, s[60:63], s78 offen sc1", chkrec(QG+4), FULL)], None)
    a.stamp("fpok")
    R6 = [f"v{QG+k}" for k in range(6)]
    for r in [R6[4], R6[5], R6[0], R6[1], R6[2], R6[3]]: a(f"v_and_b32 {r}, s66, {r}")
    dpp_reduce(a, "v_add_f32", [R6[4], R6[5], R6[0], R6[1], R6[2], R6[3]], [X1, X2, HM])
    ln_finish(R6[4], R6[5])
    a(f"""
    v_fma_f32 {R6[0]}, -{R6[4]}, {R6[2]}, {R6[0]}
    v_fma_f32 {R6[1]}, -{R6[4]}, {R6[3]}, {R6[1]}
    v_mul_f32 {R6[0]}, {R6[0]}, {R6[5]}
    v_mul_f32 {R6[1]}, {R6[1]}, {R6[5]}
    v_cvt_pk_bf16_f32 {T[2]}, {R6[0]}, {R6[1]}
    v_lshlrev_b32 {R6[0]}, 16, {T[2]}
    v_mul_f32 {R6[2]}, {hex(f2u(-LOG2E))}, {R6[0]}
    v_exp_f32 {R6[2]}, {R6[2]}
    v_and_b32 {R6[1]}, 0xffff0000, {T[2]}
    v_add_f32 {R6[2]}, 1.0, {R6[2]}
    v_rcp_f32 {R6[2]}, {R6[2]}
    s_nop 0
    v_mul_f32 {T[2]}, {R6[0]}, {R6[2]}
    """)
    bf16r(a, T[2], T[2])
    a(f"""
    v_mul_f32 {T[2]}, {T[2]}, {R6[1]}
    v_cvt_pk_bf16_f32 {T[2]}, {T[2]}, {T[2]}
    """)
    bfrag(BFa, T[2])
    a("s_nop 1")
    a(f"v_mfma_f32_16x16x32_bf16 {vr(ACC)}, {vr(W2)}, {vr(BFa)}, 0")
    a("s_nop 5")
    lsk = a.lab("opskip")
    diag_pub(LDS_RED2, "s79", lsk)
    a(f"{lsk}:")
    a.stamp("oppub")
    a(f"""
    s_cmp_lg_u32 s29, s28
    s_cbranch_scc1 L_fin
    s_lshl_b32 s77, s69, 13
    s_add_u32 s77, s77, {OP_OFF}
    v_mov_b32 v{PG}, 0
    v_mov_b32 v{PG+1}, 0
    v_mov_b32 v{PG+2}, 0
    v_mov_b32 v{PG+3}, 0
    v_and_b32 {T[5]}, 1, {L}
    v_lshlrev_b32 {T[5]}, 1, {T[5]}
    v_lshl_add_u32 {T[5]}, {KG}, 4, {T[5]}
    s_lshl_b32 s79, s95, 1
    """)
    if opt.get("pp", 2) >= 2:
        ppoll(f"buffer_load_dwordx4 {vr(PG)}, {G_PC}, s[60:63], s77 offen sc1", chk4(PG), ("-1", "0x00ffffff"), depth=opt.get("pp", 2))
    else:
        mpoll([(f"buffer_load_dwordx4 {vr(PG)}, {G_PC}, s[60:63], s77 offen sc1", chk4(PG), ("-1", "0x00ffffff"))], None)
    a.stamp("opok")
    pc_reduce(PG, T[2])
    bf16r(a, T[2], T[2])
    a(f"""
    v_add_f32 {T[2]}, {T[2]}, {H}
    v_cvt_pk_bf16_f32 {T[2]}, {T[2]}, {T[2]}
    s_mov_b32 exec_lo, 0x00030003
    s_mov_b32 exec_hi, 0x00030003
    buffer_store_short {T[2]}, {T[5]}, s[52:55], s79 offen
    s_mov_b64 exec, -1
    s_cmp_lg_u32 s2, 0
    s_cbranch_scc1 L_fin
    s_cmp_lg_u32 s30, 0
    s_cbranch_scc1 L_fin
    v_mov_b32 {T[2]}, s64
    v_mov_b32 {T[3]}, 0
    s_mov_b64 exec, 1
    buffer_store_dword {T[2]}, {T[3]}, s[60:63], 0 offen sc1
    s_mov_b64 exec, -1
    L_fin:
    """)
    if stamps:
        a.stamp("end")
        a(f"""
        s_lshl_b32 s77, s2, 10
        s_lshl_b32 s31, s30, 7
        s_add_u32 s77, s77, s31
        s_add_u32 s77, s77, {TS_OFF}
        v_lshlrev_b32 {T[0]}, 2, {L}
        s_mov_b32 exec_lo, -1
        s_mov_b32 exec_hi, 0
        buffer_store_dword v135, {T[0]}, s[60:63], s77 offen
        """)
        if opt.get("dbg"):
            a(f"""
            s_cmp_lg_u32 s2, {opt.get("dbg_wg", 0)}
            s_cbranch_scc1 L_end
            s_cmp_lg_u32 s30, 0
            s_cbranch_scc1 L_end
            v_readlane_b32 s31, v135, 0
            s_nop 1
            v_subrev_u32 v135, s31, v135
            v_writelane_b32 v135, s67, 0
            s_mov_b32 s48, s24
            s_mov_b32 s49, s25
            s_mov_b32 s50, 256
            s_mov_b32 s51, 0x20000
            buffer_store_dword v135, {T[0]}, s[48:51], 0 offen
            """)
    a("L_end:\ns_endpgm")
    txt = wrap_single(a.text(), 256, 512, LDS_SIZE, NV)
    if stamps:
        txt = "; STAMPS " + ",".join(a.names) + "\n" + txt
    return txt

if __name__ == "__main__":
    names = ["start","ln","qpub","k3","qok","v3","appub","mlok","apok","wppub","wpok","fppub","fpok","oppub","opok","end"]
    open("../cdna_kernels/k6dbg.s", "w").write(gen(names, {"dbg": True}))
```
